```python
import torch

def _softmax(x, axis=-1):
    return torch.softmax(x, dim=axis)

def _gelu(x):
    return torch.nn.functional.gelu(x, approximate='tanh')

def _silu(x):
    return torch.nn.functional.silu(x)

def _sigmoid(x):
    return torch.sigmoid(x)

def _layernorm(x, axis=-1, eps=1e-05):
    m = x.mean(dim=axis, keepdim=True)
    v = x.var(dim=axis, keepdim=True, unbiased=False)
    return (x - m) / torch.sqrt(v + eps)

def _scatter_add(tgt, idx, src, axis=0):
    return tgt.clone().index_add_(axis, idx, src)

def _segment_sum(src, seg, n):
    out = torch.zeros((n,) + src.shape[1:], dtype=src.dtype)
    return out.index_add_(0, seg, src)

def _pad(x, pw):
    flat = tuple((v for pair in reversed(pw) for v in pair))
    return torch.nn.functional.pad(x, flat)
kernel_name = 'gated_mix__memory_aug_recurrent_mem_tr__softmax_full_mha__prompt'

def setup_inputs():

    _w = lambda a: (lambda t: t.to(torch.bfloat16) if t.is_floating_point() else t)(torch.as_tensor(a))

    def _A_setup():
        B, S, Dm = (1, 2048, 512)
        H, Dh = (32, 128)
        M, seg = (8, 32)
        seg = min(seg, S)
        S = S // seg * seg
        return {'x': _w((lambda *s: torch.randn(*s, dtype=torch.bfloat16) * 0.05)(B, S, Dm)), 'mem0': _w((lambda *s: torch.randn(*s, dtype=torch.bfloat16) * 0.8)(B, M, Dm)), 'Wq': _w((lambda *s: torch.randn(*s, dtype=torch.bfloat16) * 1.6)(Dm, H, Dh) * Dm ** (-0.5)), 'Wk': _w((lambda *s: torch.randn(*s, dtype=torch.bfloat16) * 1.6)(Dm, H, Dh) * Dm ** (-0.5)), 'Wv': _w((lambda *s: torch.randn(*s, dtype=torch.bfloat16) * 0.8)(Dm, H, Dh) * Dm ** (-0.5)), 'Wo': _w((lambda *s: torch.randn(*s, dtype=torch.bfloat16) * 0.8)(H, Dh, Dm) * (H * Dh) ** (-0.5)), 'seg_len': seg}
    _A_in = _A_setup()

    def _B_setup():
        B, S, D = (1, 2048, 512)
        return {'x': _w((lambda *s: torch.randn(*s, dtype=torch.bfloat16) * 0.05)(B, S, D)), 'wqkv': _w((lambda *s: torch.randn(*s, dtype=torch.bfloat16) * 0.8)(D, 3 * D)), 'wo': _w((lambda *s: torch.randn(*s, dtype=torch.bfloat16) * 0.05)(D, D))}
    _B_in = _B_setup()
    return {'A_x': _A_in['x'], 'A_mem0': _A_in['mem0'], 'A_Wq': _A_in['Wq'], 'A_Wk': _A_in['Wk'], 'A_Wv': _A_in['Wv'], 'A_Wo': _A_in['Wo'], 'A_seg_len': _A_in['seg_len'], 'B_x': _B_in['x'], 'B_wqkv': _B_in['wqkv'], 'B_wo': _B_in['wo'], 'gate_w': _w((lambda *s: torch.randn(*s, dtype=torch.bfloat16) * 0.05)(512) * 16.0)}

def reference(A_x, A_mem0, A_Wq, A_Wk, A_Wv, A_Wo, A_seg_len, B_x, B_wqkv, B_wo, gate_w):

    def _A_ref(x, mem0, Wq, Wk, Wv, Wo, seg_len):
        B, S, Dm = x.shape
        H, Dh = (Wq.shape[1], Wq.shape[2])
        M = mem0.shape[1]
        scale = Dh ** (-0.5)
        n_seg = S // seg_len
        L = M + seg_len
        idx = torch.arange(L)
        mask = (idx[:, None] < M) | (idx[:, None] >= idx[None, :])
        mem = mem0
        outs = []
        for s in range(n_seg):
            xs = x[:, s * seg_len:(s + 1) * seg_len, :].clone()
            h = torch.concatenate([mem, xs], axis=1)
            q = torch.einsum('btd,dhe->bhte', h, Wq)
            k = torch.einsum('btd,dhe->bhte', h, Wk)
            v = torch.einsum('btd,dhe->bhte', h, Wv)
            scores = torch.einsum('bhqe,bhke->bhqk', q, k) * scale
            scores = torch.where(mask[None, None], scores, -1000000000.0)
            p = _softmax(scores, axis=-1)
            o = torch.einsum('bhqk,bhke->bhqe', p, v)
            o = torch.einsum('bhte,hed->btd', o, Wo)
            mem = o[:, :M, :].clone()
            outs.append(o[:, M:, :])
        return torch.concatenate(outs, axis=1)

    def _B_ref(x, wqkv, wo):
        B, S, D = x.shape
        H = 32
        Dh = D // H
        qkv = (lambda x, *d: x.permute(*d))((x @ wqkv).reshape(B, S, 3, H, Dh), 2, 0, 3, 1, 4)
        q, k, v = (qkv[0], qkv[1], qkv[2])
        scale = Dh ** (-0.5)
        scores = torch.einsum('bhqd,bhkd->bhqk', q, k) * scale
        p = _softmax(scores, axis=-1)
        o = torch.einsum('bhqk,bhkd->bhqd', p, v)
        return (lambda x, *d: x.permute(*d))(o, 0, 2, 1, 3).reshape(B, S, D) @ wo
    x = A_x
    g = _sigmoid((x * gate_w).sum(-1, keepdims=True))
    a = _A_ref(x, A_mem0, A_Wq, A_Wk, A_Wv, A_Wo, A_seg_len)
    b = _B_ref(x, B_wqkv, B_wo)
    return g * a + (1 - g) * b
```

```python
from asmlib import *
from layout import *
from chain8 import sWS
sA, sB, sCc, sD = 40, 41, 42, 43
sMask = 64
vLn16, vKm, vVm, vG4, vG, vNeg = 8, 9, 10, 11, 12, 13
Q, K, KM, V, VM, SX, SM, PX, PM = 16, 48, 80, 112, 144, 160, 176, 192, 200
OT = (16, 32, 48, 64)

def aattn_setup(a):
    a(f"""
    v_and_b32 v1, 63, v0
    v_lshlrev_b32 {vr(vLn16)}, 4, v1
    v_lshrrev_b32 v2, 5, v1                  ; hi
    v_and_b32 v3, 7, v1
    v_lshlrev_b32 {vr(vKm)}, 8, v2
    v_lshl_add_u32 {vr(vVm)}, v3, 4, {vr(vKm)}
    v_add_u32 {vr(vKm)}, 128, {vr(vVm)}
    v_bfe_u32 v3, v1, 4, 1
    v_lshl_add_u32 {vr(vVm)}, v3, 7, {vr(vVm)}
    v_and_b32 v3, 8, v1
    v_add_u32 {vr(vVm)}, {vr(vVm)}, v3
    v_and_b32 v3, 31, v1
    v_lshlrev_b32 {vr(vG4)}, 2, v3
    v_lshlrev_b32 v2, 2, v2
    v_sub_u32 v3, v3, v2
    v_mov_b32 {vr(vNeg)}, 0xff800000
    """)
    for j in range(4):
        for i in range(4):
            a(f"v_cmp_le_i32 {sr(sMask + 2*(4*j+i), 2)}, {8*j+i}, v3")

def aattn_loads_x(a, sh, fl=""):
    a(f"s_lshl_b32 {sr(sA)}, {sr(sh)}, 13")
    for base, off in ((K, KX_OFF), (Q, QX_OFF), (V, VT_OFF)):
        for half in range(2):
            a(f"s_add_u32 {sr(sB)}, {sr(sA)}, {off + half*4096}")
            for j in range(4):
                a(f"buffer_load_dwordx4 {vr(base + 16*half + 4*j, 4)}, {vr(vLn16)}, {sr(sWS,4)}, {sr(sB)} offen offset:{j*1024} {fl}")
    a(f"""
    s_lshr_b32 {sr(sB)}, {sr(sh)}, 5
    s_lshl_b32 {sr(sB)}, {sr(sB)}, 7
    s_add_u32 {sr(sB)}, {sr(sB)}, {G_OFF}
    buffer_load_dword {vr(vG)}, {vr(vG4)}, {sr(sWS,4)}, {sr(sB)} offen {fl}
    """)
def aattn_loads_m(a, sh, fl=""):
    a(f"s_lshl_b32 {sr(sA)}, {sr(sh)}, 12\ns_add_u32 {sr(sB)}, {sr(sA)}, {KM_OFF}")
    for j in range(8):
        a(f"buffer_load_dwordx4 {vr(KM+4*j,4)}, {vr(vKm)}, {sr(sWS,4)}, {sr(sB)} offen offset:{j*512} {fl}")
    a(f"s_add_u32 {sr(sB)}, {sr(sA)}, {VM_OFF}")
    for j in range(8):
        a(f"buffer_load_dwordx2 {vr(VM+2*j,2)}, {vr(vVm)}, {sr(sWS,4)}, {sr(sB)} offen offset:{j*512} {fl}")

def aattn_compute(a, sh, stflags=""):
    mf = lambda d, A, B, C: a(f"v_mfma_f32_32x32x16_bf16 {vr(d,16)}, {vr(A,4)}, {vr(B,4)}, {C}")
    a("s_waitcnt vmcnt(25)")
    for j in range(8): mf(SX, K + 4 * j, Q + 4 * j, "0" if j == 0 else vr(SX, 16))
    a("s_waitcnt vmcnt(8)")
    for j in range(8): mf(SM, KM + 4 * j, Q + 4 * j, "0" if j == 0 else vr(SM, 16))
    for r in range(16): a(f"v_cndmask_b32 {vr(SX+r)}, {vr(vNeg)}, {vr(SX+r)}, {sr(sMask+2*r,2)}")
    a(f"v_max_f32 v1, {vr(SX)}, {vr(SX+1)}")
    for r in range(2, 16, 2): a(f"v_max3_f32 v1, v1, {vr(SX+r)}, {vr(SX+r+1)}")
    for r in range(0, 4, 2): a(f"v_max3_f32 v1, v1, {vr(SM+r)}, {vr(SM+r+1)}")
    a("v_mov_b32 v2, v1\nv_permlane32_swap_b32 v1, v2\nv_max_f32 v1, v1, v2")
    regs = [SX + r for r in range(16)] + [SM + r for r in range(4)]
    for r in regs: a(f"v_sub_f32 {vr(r)}, {vr(r)}, v1")
    for r in regs: a(f"v_exp_f32 {vr(r)}, {vr(r)}")
    for r in range(8): a(f"v_cvt_pk_bf16_f32 {vr(PX+r)}, {vr(SX+2*r)}, {vr(SX+2*r+1)}")
    for r in range(4): a(f"v_cvt_pk_bf16_f32 {vr(PM+r)}, {vr(SM+2*(r&1))}, {vr(SM+2*(r&1)+1)}")
    a("s_waitcnt vmcnt(0)")
    for eb in range(4):
        mf(OT[eb], V + 8 * eb, PX, "0")
        mf(OT[eb], V + 8 * eb + 4, PX + 4, vr(OT[eb], 16))
        mf(OT[eb], VM + 4 * eb, PM, vr(OT[eb], 16))
        if eb == 0:
            a(f"v_pk_add_f32 v[2:3], {vr(SX,2)}, {vr(SX+2,2)}")
            for r in list(range(SX + 4, SX + 16, 2)) + [SM, SM + 2]: a(f"v_pk_add_f32 v[2:3], v[2:3], {vr(r,2)}")
            a(f"""
            v_add_f32 v2, v2, v3
            v_mov_b32 v3, v2
            v_permlane32_swap_b32 v2, v3
            v_add_f32 v2, v2, v3
            v_rcp_f32 v2, v2
            v_mul_f32 v2, v2, {vr(vG)}
            """)
    a(f"""
    s_lshr_b32 {sr(sA)}, {sr(sh)}, 5
    s_mul_i32 {sr(sA)}, {sr(sA)}, {O_SEG}
    s_and_b32 {sr(sB)}, {sr(sh)}, 31
    s_lshl_b32 {sr(sB)}, {sr(sB)}, 13
    s_add_u32 {sr(sA)}, {sr(sA)}, {sr(sB)}
    s_add_u32 {sr(sA)}, {sr(sA)}, {O_OFF}
    s_add_u32 {sr(sB)}, {sr(sA)}, 4096
    """)
    for eb in range(4):
        o = OT[eb]
        for r in range(0, 16, 2): a(f"v_pk_mul_f32 {vr(o+r,2)}, {vr(o+r,2)}, v[2:3] op_sel_hi:[1,0]")
        for r in range(8): a(f"v_cvt_pk_bf16_f32 {vr(o+r)}, {vr(o+2*r)}, {vr(o+2*r+1)}")
        for u in range(2):
            a(f"buffer_store_dwordx4 {vr(o+4*u,4)}, {vr(vLn16)}, {sr(sWS,4)}, {sr(sA if eb < 2 else sB)} offen offset:{(eb&1)*2048 + u*1024} {stflags}")
```

```python
import re

def vr(a, n=1):
    return f"v{a}" if n == 1 else f"v[{a}:{a+n-1}]"
def ar(a, n=1):
    return f"a{a}" if n == 1 else f"a[{a}:{a+n-1}]"
def sr(a, n=1):
    return f"s{a}" if n == 1 else f"s[{a}:{a+n-1}]"

_REG = re.compile(r"^(-?)(?:abs\()?([vas])(?:(\d+)|\[(\d+):(\d+)\])\)?$")
def regs_of(op):
    op = op.strip()
    if op in ("vcc", "exec", "m0", "scc"):
        return {op}
    if op in ("vcc_lo", "vcc_hi"): return {"vcc"}
    if op in ("exec_lo", "exec_hi"): return {"exec"}
    m = _REG.match(op)
    if not m:
        return set()
    k = m.group(2)
    if m.group(3) is not None:
        return {k + m.group(3)}
    return {k + str(i) for i in range(int(m.group(4)), int(m.group(5)) + 1)}

TRANS = ("v_exp_f32", "v_log_f32", "v_rcp_f32", "v_rsq_f32", "v_sqrt_f32", "v_sin_f32", "v_cos_f32")

class Asm:
    WIN = 48
    def __init__(self):
        self.lines = []
        self.rec = []
        self.h = {}
        self.lastD = {}
        self.snap = {}
        self.nlabel = 0
        self.nops_inserted = 0
    def raw(self, s): self.lines.append(s)
    def comment(self, s): self.lines.append("; " + s)
    def newlabel(self, base="L"):
        self.nlabel += 1
        return f"{base}_{self.nlabel}"
    def _lb(self, p, kind):
        n = len(self.rec)
        if n - p > self.WIN: return 1000
        t = 0; lastM = None
        for i in range(p, n + 1):
            k = self.rec[i][0] if i < n else kind
            if i > p:
                t += self.rec[i - 1][1]
                if lastM is not None:
                    if k == "M": t = max(t, lastM[0] + lastM[1])
                    elif k == "V" and lastM[2]: t = max(t, lastM[0] + 3)
            if i < n and k == "M": lastM = (t, self.rec[i][2], self.rec[i][3])
        return t
    def _short(self, keys, kind):
        sh = 0
        for k in keys:
            for (p, d) in self.h.get(k, ()):
                sh = max(sh, d - self._lb(p, kind))
        return sh
    def _ensure(self, keys, kind):
        while True:
            sh = self._short(keys, kind)
            if sh <= 0: return
            n = min(max(self._short(keys, "O"), 1), 16)
            self._nop(n)
    def _nop(self, n):
        self.lines.append(f"s_nop {n-1}"); self.rec.append(("O", n, 0, False)); self.nops_inserted += n
    def _set(self, regs, cls, dist):
        p = len(self.rec) - 1
        for r in regs:
            l = [x for x in self.h.get((r, cls), []) if len(self.rec) - x[0] <= self.WIN]
            l.append((p, dist)); self.h[(r, cls)] = l
    def label(self, name):
        self.lines.append(name + ":")
        if name in self.snap:
            self.rec.append(("O", 0, 0, False))
            p = len(self.rec) - 1
            for rem in self.snap[name]:
                for k, d in rem.items():
                    self.h.setdefault(k, []).append((p, d))
            self.lastD = {}
    def drain(self):
        self._ensure(list(self.h.keys()), "O")
    def __call__(self, text):
        for line in text.strip().split("\n"):
            line = line.strip()
            if not line or line.startswith(";"):
                if line: self.lines.append(line)
                continue
            if line.endswith(":"):
                self.label(line[:-1]); continue
            self.ins(line)
    def ins(self, line):
        code = line.split(";")[0].strip()
        sp = code.split(None, 1)
        mn = sp[0]
        rest = sp[1] if len(sp) > 1 else ""
        ops = []; mods = ""
        if rest:
            depth = 0; cur = ""
            for ch in rest:
                if ch == "[": depth += 1
                if ch == "]": depth -= 1
                if ch == "," and depth == 0:
                    ops.append(cur.strip()); cur = ""
                else:
                    cur += ch
            ops.append(cur.strip())
            last = ops[-1].split(None, 1)
            ops[-1] = last[0]
            mods = last[1] if len(last) > 1 else ""
        R = [regs_of(o) for o in ops]
        K = lambda regs, *cls: [(r, c) for r in regs for c in cls]
        if mn == "s_nop":
            self.lines.append(line); self.rec.append(("O", int(ops[0], 0) + 1, 0, False)); return
        is_mfma = mn.startswith("v_mfma") or mn.startswith("v_smfmac")
        is_valu = mn.startswith("v_") and not is_mfma
        is_ds = mn.startswith("ds_")
        is_vmem = mn.startswith("buffer_") or mn.startswith("global_")
        isv = lambda r: r[0] in "va" and r != "vcc"
        if is_mfma:
            sparse = mn.startswith("v_smfmac")
            passes = 8 if "32x32" in mn else 4
            D = R[0]; AB = R[1] | R[2]
            if sparse: C = D; AB |= R[3]
            else: C = R[3]
            key = (ops[0], mn); cop = ops[0] if sparse else ops[3]
            keys = K(AB, "any", "mfma") + K(C, "mfma") + K({"exec"}, "mfma")
            keys += K({r for r in C if self.lastD.get(r) != (cop, mn)}, "mfmaC")
            keys += K({r for r in D - C if self.lastD.get(r) != key}, "mfmaC")
            self._ensure(keys, "M")
            self.lines.append(line); self.rec.append(("M", 1, passes, sparse))
            self._set(D, "any", (8 if passes == 4 else 12) + 1)
            self._set(D, "mfmaC", (6 if passes == 4 else 10) + 1)
            self._set(C, "valu_wr", (3 if passes == 4 else 7) + 1)
            for r in D: self.lastD[r] = key
            return
        if is_valu:
            dpp = "_dpp" in mn or "row_" in mods or "quad_perm" in mods
            if mn.startswith("v_cmp"):
                W = R[0]; S = set().union(*R[1:])
                if mn.startswith("v_cmpx"): W = W | {"exec"}
            elif mn.startswith("v_permlane") and "swap" in mn:
                W = R[0] | R[1]; S = R[0] | R[1]
            elif mn in ("v_add_co_u32", "v_sub_co_u32", "v_addc_co_u32", "v_subb_co_u32", "v_mad_u64_u32"):
                W = R[0] | R[1]; S = set().union(*R[2:])
            else:
                W = R[0]; S = set().union(*R[1:]) if len(R) > 1 else set()
                if mn.startswith(("v_fmac", "v_dot2c", "v_writelane")) or (dpp and ("bank_mask:0xf" not in mods or "row_mask:0xf" not in mods)):
                    S = S | W
            vS = {r for r in S if isv(r)}; sS = S - vS
            vW = {r for r in W if isv(r)}; sW = W - vW
            base = mn.replace("_e32", "").replace("_e64", "")
            keys = K(vS | vW, "any") + K(vW, "valu_wr") + K(sS, "valu_const")
            if base not in TRANS: keys += K(vS, "valu_nt")
            if dpp: keys += K(vS, "dpp") + K({"exec"}, "dpp")
            if mn.startswith("v_permlane"): keys += K(vS, "perm") + K({"exec"}, "mfma")
            if mn.startswith(("v_readlane", "v_readfirstlane")): keys += K(vS, "rdlane") + K({"exec"}, "mfma")
            if mn.startswith(("v_readlane", "v_writelane")): keys += K(sS, "lanesel")
            self._ensure(keys, "V")
            self.lines.append(line); self.rec.append(("V", 1, 0, False))
            for c in ("mfma", "dpp", "perm"): self._set(vW, c, 3)
            self._set(vW, "rdlane", 2)
            if base in TRANS: self._set(vW, "valu_nt", 2)
            self._set(sW, "valu_const", 3); self._set(sW, "vmem_s", 6); self._set(sW, "lanesel", 5)
            if "exec" in sW:
                self._set({"exec"}, "dpp", 6); self._set({"exec"}, "mfma", 5)
            for r in vW: self.lastD.pop(r, None)
            return
        if is_ds or is_vmem:
            allr = set().union(*R) if R else set()
            vA = {r for r in allr if isv(r)}; sA = allr - vA
            dma = is_vmem and (" lds" in " " + mods or "load_lds" in mn)
            keys = K(vA, "any") + K(sA, "vmem_s")
            if dma: keys += K({"m0"}, "dma")
            is_load = ("load" in mn or "read" in mn or "bpermute" in mn or "swizzle" in mn or ("atomic" in mn and "sc0" in mods)) and not dma
            if is_load: keys += K(R[0], "valu_wr")
            self._ensure(keys, "O")
            self.lines.append(line); self.rec.append(("O", 1, 0, False))
            if is_vmem and "store" in mn and ("x4" in mn or "x3" in mn):
                self._set(R[0] if mn.startswith("buffer_") else R[1], "valu_wr", 3)
            if is_load:
                for r in R[0]: self.lastD.pop(r, None)
            return
        self.lines.append(line); self.rec.append(("O", 1, 0, False))
        if mn.startswith(("s_cbranch", "s_branch")):
            rem = {}
            for k, l in self.h.items():
                d = max([dd - self._lb(p, "O") for (p, dd) in l] + [0])
                if d > 0: rem[k] = d
            self.snap.setdefault(ops[0], []).append(rem)
            return
        if ops and ops[0] == "m0": self._set({"m0"}, "dma", 2)
    def text(self):
        return "\n".join(self.lines) + "\n"
```

```python
from asmlib import *
from layout import *
from chain8 import sWS
sWv = 36
sA, sB, sCc, sD = 40, 41, 42, 43
sHd, sTb, sIt = 20, 21, 22
sEx = 24
vLn16, vKr, vVr, vVs, vMx, vG = 50, 51, 52, 53, 54, 55
QF = 56
KF = (60, 64, 68, 72)
VF = (76, 80, 84, 88)
CN = 96
S = (112, 128, 144, 160)
PK = (176, 184)
OA = 192

def battn_setup(a):
    a(f"""
    v_and_b32 v1, 63, v0
    v_lshlrev_b32 {vr(vLn16)}, 4, v1
    v_and_b32 v2, 15, v1
    v_lshrrev_b32 v3, 5, v1
    v_lshlrev_b32 {vr(vVr)}, 4, v2
    v_lshl_add_u32 {vr(vVr)}, v3, 8, {vr(vVr)}
    v_add_u32 {vr(vVr)}, 65536, {vr(vVr)}
    v_lshrrev_b32 v3, 4, v1
    v_lshlrev_b32 {vr(vVs)}, 4, v2
    v_lshl_add_u32 {vr(vVs)}, v3, 9, {vr(vVs)}
    s_mov_b32 {sr(sEx)}, 0xffff
    s_mov_b32 {sr(sEx+1)}, 0xffff
    """)

def battn_task(a, task, ldflags="", stflags=""):
    mf = lambda d, A, B, C: a(f"v_mfma_f32_32x32x16_bf16 {vr(d,16)}, {vr(A,4)}, {vr(B,4)}, {C}")
    a(f"""
    s_lshr_b32 {sr(sHd)}, {sr(task)}, 3
    s_and_b32 {sr(sTb)}, {sr(task)}, 7
    s_lshl_b32 {sr(sTb)}, {sr(sTb)}, 3
    s_add_u32 {sr(sTb)}, {sr(sTb)}, {sr(sWv)}
    s_lshl_b32 {sr(sA)}, {sr(sHd)}, 16
    s_lshl_b32 {sr(sB)}, {sr(sTb)}, 10
    s_add_u32 {sr(sB)}, {sr(sB)}, {sr(sA)}
    s_add_u32 {sr(sB)}, {sr(sB)}, {QB_OFF}
    buffer_load_dwordx4 {vr(QF,4)}, {vr(vLn16)}, {sr(sWS,4)}, {sr(sB)} offen {ldflags}
    s_lshl_b32 {sr(sB)}, {sr(sTb)}, 7
    s_add_u32 {sr(sB)}, {sr(sB)}, {G_OFF}
    v_bfe_u32 v1, {vr(vLn16)}, 4, 5
    v_lshlrev_b32 v1, 2, v1
    buffer_load_dword {vr(vG)}, v1, {sr(sWS,4)}, {sr(sB)} offen {ldflags}
    s_lshl_b32 {sr(sD)}, {sr(sWv)}, 13
    s_add_u32 {sr(sA)}, {sr(sA)}, {sr(sD)}
    s_add_u32 {sr(sA)}, {sr(sA)}, {KB_OFF}
    """)
    for i in range(2):
        a(f"s_add_u32 m0, {sr(sD)}, {i*4096}")
        for j in range(4):
            a(f"buffer_load_dwordx4 {vr(vLn16)}, {sr(sWS,4)}, {sr(sA)} offen offset:{j*1024} lds {ldflags}")
        if i == 0: a(f"s_add_u32 {sr(sA)}, {sr(sA)}, 4096")
    a(f"""
    s_lshr_b32 {sr(sA)}, {sr(sHd)}, 1
    s_lshl_b32 {sr(sA)}, {sr(sA)}, 17
    s_and_b32 {sr(sB)}, {sr(sHd)}, 1
    s_lshl_b32 {sr(sB)}, {sr(sB)}, 8
    s_add_u32 {sr(sA)}, {sr(sA)}, {sr(sB)}
    s_lshl_b32 {sr(sB)}, {sr(sWv)}, 14
    s_add_u32 {sr(sA)}, {sr(sA)}, {sr(sB)}
    s_add_u32 {sr(sA)}, {sr(sA)}, {VB_OFF}
    """)
    for i in range(8):
        a(f"s_add_u32 m0, {sr(sD)}, {65536 + i*1024}")
        a(f"buffer_load_dwordx4 {vr(vVs)}, {sr(sWS,4)}, {sr(sA)} offen lds {ldflags}")
        if i < 7: a(f"s_add_u32 {sr(sA)}, {sr(sA)}, 2048")
    for f in VF:
        for r in range(4): a(f"v_mov_b32 {vr(f+r)}, 0x3f803f80")
    for r in range(0, 16, 2): a(f"v_mov_b64 {vr(OA+r,2)}, 0")
    a(f"v_mov_b32 {vr(vMx)}, 0xff800000\nv_mov_b32 {vr(vKr)}, {vr(vLn16)}")
    a("s_waitcnt vmcnt(8)\ns_barrier")
    rdk = lambda j, t: a(f"ds_read_b128 {vr(KF[j],4)}, {vr(vKr)} offset:{t*1024}")
    for j in range(4): rdk(j, j)
    a(f"s_mov_b32 {sr(sIt)}, 0")
    for r in range(0, 32, 2): a(f"v_mov_b64 {vr(S[2]+r,2)}, {vr(vMx)}" if False else f"v_mov_b32 {vr(S[2]+r)}, {vr(vMx)}\nv_mov_b32 {vr(S[2]+r+1)}, {vr(vMx)}")
    def mx(sb):
        for j in range(8): a(f"v_max3_f32 {vr(vMx)}, {vr(vMx)}, {vr(sb+2*j)}, {vr(sb+2*j+1)}")
    top = a.newlabel("Lb1")
    a.label(top)
    for j in range(4):
        a("s_waitcnt lgkmcnt(3)")
        mf(S[j], KF[j], QF, "0")
        rdk(j, 4 + j)
        mx(S[(j + 2) & 3])
    a(f"v_add_u32 {vr(vKr)}, 4096, {vr(vKr)}")
    a(f"s_add_u32 {sr(sIt)}, {sr(sIt)}, 1\ns_cmp_lt_u32 {sr(sIt)}, 16\ns_cbranch_scc1 {top}")
    mx(S[2]); mx(S[3])
    a(f"""
    v_mov_b32 v1, {vr(vMx)}
    v_mov_b32 {vr(vKr)}, {vr(vLn16)}
    s_waitcnt lgkmcnt(0)
    v_permlane32_swap_b32 {vr(vMx)}, v1
    v_max_f32 {vr(vMx)}, {vr(vMx)}, v1
    """)
    for r in range(16): a(f"v_sub_f32 {vr(CN+r)}, 0, {vr(vMx)}")
    a(f"v_mov_b32 v2, {vr(vVr)}")
    a("s_waitcnt vmcnt(0)\ns_barrier")
    def rdv(p, t):
        a(f"s_mov_b64 exec, {sr(sEx,2)}")
        for u in range(2): a(f"ds_read_b128 {vr(VF[2*p+u],4)}, v2 offset:{t*1024 + u*512}")
        a("s_mov_b64 exec, -1")
    for j in range(4): rdk(j, j)
    rdv(0, 0); rdv(1, 1)
    a("s_waitcnt lgkmcnt(6)")
    mf(S[0], KF[0], QF, vr(CN, 16)); mf(S[1], KF[1], QF, vr(CN, 16))
    rdk(0, 4); rdk(1, 5)
    a(f"s_mov_b32 {sr(sIt)}, 0")
    top = a.newlabel("Lb2")
    a.label(top)
    for j in range(4):
        p = j & 1; sb = S[j]
        a("s_waitcnt lgkmcnt(3)")
        mf(S[(j + 2) & 3], KF[(j + 2) & 3], QF, vr(CN, 16))
        rdk((j + 2) & 3, j + 6)
        for r in range(8): a(f"v_exp_f32 {vr(sb+r)}, {vr(sb+r)}")
        a(f"v_exp_f32 {vr(sb+8)}, {vr(sb+8)}")
        for r in range(4): a(f"v_cvt_pk_bf16_f32 {vr(PK[p]+r)}, {vr(sb+2*r)}, {vr(sb+2*r+1)}")
        for r in range(9, 11): a(f"v_exp_f32 {vr(sb+r)}, {vr(sb+r)}")
        mf(OA, VF[2 * p], PK[p], vr(OA, 16))
        for r in range(11, 16): a(f"v_exp_f32 {vr(sb+r)}, {vr(sb+r)}")
        for r in range(4, 8): a(f"v_cvt_pk_bf16_f32 {vr(PK[p]+r)}, {vr(sb+2*r)}, {vr(sb+2*r+1)}")
        mf(OA, VF[2 * p + 1], PK[p] + 4, vr(OA, 16))
        rdv(p, j + 2)
    a(f"v_add_u32 {vr(vKr)}, 4096, {vr(vKr)}\nv_add_u32 v2, 4096, v2")
    a(f"s_add_u32 {sr(sIt)}, {sr(sIt)}, 1\ns_cmp_lt_u32 {sr(sIt)}, 16\ns_cbranch_scc1 {top}")
    a(f"""
    v_sub_f32 {vr(vG)}, 1.0, {vr(vG)}
    s_mul_i32 {sr(sA)}, {sr(sTb)}, {O_SEG}
    s_lshl_b32 {sr(sB)}, {sr(sHd)}, 10
    s_add_u32 {sr(sA)}, {sr(sA)}, {sr(sB)}
    s_add_u32 {sr(sA)}, {sr(sA)}, {O_OFF + 256*1024}
    v_rcp_f32 v1, {vr(OA+8)}
    v_mul_f32 v1, v1, {vr(vG)}
    """)
    for r in range(8): a(f"v_mul_f32 {vr(OA+r)}, {vr(OA+r)}, v1")
    for r in range(4): a(f"v_cvt_pk_bf16_f32 {vr(4+r)}, {vr(OA+2*r)}, {vr(OA+2*r+1)}")
    a(f"buffer_store_dwordx4 v[4:7], {vr(vLn16)}, {sr(sWS,4)}, {sr(sA)} offen {stflags}")
    a("s_waitcnt lgkmcnt(0)\ns_barrier")
```

```python
import math, struct
from asmlib import *
from layout import *

def f32bits(x): return struct.unpack("<I", struct.pack("<f", x))[0]
DBG = {}
L_M = 0
L_KV = 8192
L_SX = 24576
L_O = L_SX
L_SM = 28672
L_SELR = 30720
L_MISC = 31744
L_K1 = 32768
L_V1 = 65536
L_K0 = 131072
LDS_BYTES = 160 * 1024
vL16, vW16, vW2, vIDX, T0 = 56, 57, 58, 59, 60
WVB = 64
MS = 0; RG = 16; ST = 32; SELT = 48
vSmw, vSm, vOw, T1, vX1, vX2, vX3 = 52, 53, 54, 55, 61, 62, 63
XB = 0; AV = 16; KVN = 24; ZB = 40
vOr, vPst, vVx = 61, 62, 63
sWS = 4
sH, sW, sS, sRole = 12, 13, 14, 15
sM0, sM1 = 16, 17
sP = 18
sH1a, sPk, sMst, sE, sMr, sKx, sVt, sKm, sVm, sC1, sC2, sSpin = range(22, 34)
sC = 34
sExLo = 36; sExHi = 38
sTmp = 40; sTmp2 = 41; sTmp3 = 42
sDBG = 44
sEnd = 46
sPv = 47
sF = 43
sSt = 48

def opreg(n):
    return ("v", WVB + n * 8)
def wloc(m, i, t):
    if m == "q": return opreg(i * 2 + t)
    if m == "k": return opreg(16 + i) if t == 1 else None
    if m == "v": return opreg(16 + (i - 4) * 2 + t) if i >= 4 else None
    p, c = i
    return opreg(p * 4 + c * 2 + t)
def rstr(loc, n=8, off=0): return f"{loc[0]}[{loc[1]+off}:{loc[1]+off+n-1}]"
def smf(a, d, A, B): a(f"v_smfmac_f32_16x16x64_bf16 {vr(d,4)}, {vr(A,4)}, {B}, {vr(vIDX)}")
def k_addr(i, half): return (vW2, (i * 2 + half) * 4096) if i < 4 else (vW16, L_K1 + ((i - 4) * 2 + half) * 4096)
def v_addr(i, t, half): return (vW2, (i * 4 + t * 2 + half) * 4096)
def rd_k(a, i):
    for h in range(2):
        va, off = k_addr(i, h); a(f"ds_read_b128 {vr(ST + 8*(i&1) + 4*h, 4)}, {vr(va)} offset:{off}")
def vstage(i): return KVN if (i == 0 and DBG.get('kvstage', 1)) else ZB
def rd_v(a, i, t):
    for h in range(2):
        va, off = v_addr(i, t, h); a(f"ds_read_b128 {vr(vstage(i) + 8*t + 4*h, 4)}, {vr(va)} offset:{off}")

def onehot_pairs(a, dst, dv, ds, c_lo, c_hi):
    for r, d in enumerate(ds):
        a(f"""
        v_cmp_eq_u32 vcc, {d}, {vr(dv)}
        v_cndmask_b32 {vr(dst+r)}, 0, {vr(c_lo)}, vcc
        v_cmp_eq_u32 vcc, {d+1}, {vr(dv)}
        v_cndmask_b32 {vr(dst+r)}, {vr(dst+r)}, {vr(c_hi)}, vcc
        """)

def setup_common(a):
    a(f"""
    v_and_b32 v1, 63, v0
    v_lshlrev_b32 {vr(vL16)}, 4, v1
    s_lshl_b32 {sr(sTmp)}, {sr(sW)}, 10
    v_add_u32 {vr(vW16)}, {sr(sTmp)}, {vr(vL16)}
    s_lshr_b32 {sr(sTmp)}, {L_K0}, {sr(sRole)}
    v_add_u32 {vr(vW2)}, {sr(sTmp)}, {vr(vW16)}
    v_and_b32 v2, 8, v1
    v_cmp_eq_u32 vcc, 0, v2
    s_mov_b64 {sr(sExLo,2)}, vcc
    s_not_b64 {sr(sExHi,2)}, vcc
    v_mov_b32 v3, 0xeeee
    v_mov_b32 v4, 0x4444
    v_cndmask_b32 {vr(vIDX)}, v3, v4, vcc
    """)
    c = (128 ** -0.5) * math.log2(math.e)
    a(f"s_mov_b32 {sr(sC)}, {hex(f32bits(c))}\ns_mov_b32 {sr(sC+1)}, {hex(f32bits(c))}")

def setup_A(a):
    a(f"""
    v_lshrrev_b32 v1, 4, {vr(vL16)}          ; lane
    v_xor_b32 {vr(vX1)}, 1024, {vr(vW16)}
    v_xor_b32 {vr(vX2)}, 2048, {vr(vW16)}
    v_xor_b32 {vr(vX3)}, 3072, {vr(vW16)}
    v_lshrrev_b32 {vr(vSmw)}, 1, {vr(vW16)}
    v_or_b32 {vr(vSm)}, 32, v1
    v_lshlrev_b32 {vr(vSm)}, 3, {vr(vSm)}
    v_add_u32 {vr(vSm)}, {L_SM}, {vr(vSm)}
    v_lshrrev_b32 v2, 4, v1                  ; g
    v_and_b32 v3, 7, v1                      ; r
    v_and_b32 v4, 8, v1
    v_lshl_add_u32 {vr(vOw)}, v2, 7, v4
    v_lshl_add_u32 {vr(vOw)}, v3, 4, {vr(vOw)}
    s_lshl_b32 {sr(sTmp)}, {sr(sW)}, 9
    v_add_u32 {vr(vOw)}, {sr(sTmp)}, {vr(vOw)}
    v_and_b32 v4, 15, v1
    v_and_b32 v2, 1, v2
    v_lshlrev_b32 v2, 2, v2
    v_sub_u32 v2, v4, v2                     ; n - 4*(g&1)
    v_mov_b32 v5, 0x3f80
    v_mov_b32 v6, 0x3f800000
    """)
    onehot_pairs(a, SELT, 2, (0, 2, 8, 10), 5, 6)
    onehot_pairs(a, 8, 3, (0, 2, 4, 6), 5, 6)
    a(f"ds_write_b128 {vr(vL16)}, v[8:11] offset:{L_SELR}")
    mst_addr(a, T1, T0)

def setup_B(a):
    a(f"""
    v_lshrrev_b32 v1, 4, {vr(vL16)}          ; lane
    v_lshrrev_b32 v2, 4, v1                  ; g
    v_and_b32 v3, 7, v1
    v_and_b32 v4, 15, v1                     ; n
    v_lshlrev_b32 {vr(vOr)}, 7, v2
    v_lshl_add_u32 {vr(vOr)}, v3, 4, {vr(vOr)}
    v_lshrrev_b32 v5, 1, v2
    v_lshlrev_b32 {vr(vPst)}, 13, v5
    v_lshl_add_u32 {vr(vPst)}, v3, 4, {vr(vPst)}
    v_lshrrev_b32 v5, 3, v4
    v_lshl_add_u32 {vr(vPst)}, v5, 12, {vr(vPst)}
    v_and_b32 v5, 1, v2
    v_lshl_add_u32 {vr(vPst)}, v5, 3, {vr(vPst)}
    v_bfe_u32 v5, v1, 3, 1
    v_lshlrev_b32 {vr(vVx)}, 12, v5
    v_lshrrev_b32 v5, 5, v1
    v_lshl_add_u32 {vr(vVx)}, v5, 8, {vr(vVx)}
    v_bfe_u32 v5, v1, 4, 1
    v_lshl_add_u32 {vr(vVx)}, v5, 7, {vr(vVx)}
    v_lshl_add_u32 {vr(vVx)}, v3, 4, {vr(vVx)}
    s_lshl_b32 {sr(sTmp)}, {sr(sW)}, 10
    v_add_u32 {vr(vVx)}, {sr(sTmp)}, {vr(vVx)}
    """)

def mst_addr(a, d, t):
    a(f"""
    v_and_b32 {vr(d)}, 0x70, {vr(vL16)}
    v_bfe_u32 {vr(t)}, {vr(vL16)}, 9, 1
    v_lshl_add_u32 {vr(d)}, {vr(t)}, 2, {vr(d)}
    v_bfe_u32 {vr(t)}, {vr(vL16)}, 8, 1
    v_lshl_add_u32 {vr(d)}, {vr(t)}, 3, {vr(d)}
    """)

def init_rings(a, st, slot0):
    a(f"""
    v_mov_b32 v8, -1
    v_mov_b32 v9, -1
    v_mov_b32 v10, -1
    v_mov_b32 v11, -1
    s_lshl_b32 {sr(sTmp)}, {sr(sH)}, 12
    s_lshl_b32 {sr(sTmp2)}, {sr(sRole)}, 17
    s_add_u32 {sr(sTmp)}, {sr(sTmp)}, {sr(sTmp2)}
    s_add_u32 {sr(sTmp)}, {sr(sTmp)}, {P_OFF}
    """)
    a(f"buffer_store_dwordx4 v[8:11], {vr(vW16)}, {sr(sWS,4)}, {sr(sTmp)} offen {st}")
    assert RING == 4
    nz = a.newlabel("Lnz")
    a(f"""
    s_mov_b64 exec, 0xff
    s_lshl_b32 {sr(sTmp3)}, {sr(sRole)}, 5
    s_add_u32 {sr(sTmp3)}, {sr(sTmp3)}, {sr(sH)}
    s_cmp_eq_u32 {sr(sW)}, {slot0}
    s_cbranch_scc0 {nz}
    s_load_dwordx2 s[64:65], s[0:1], {A_MEM0}
    v_lshlrev_b32 v13, 6, {vr(vL16)}
    s_lshl_b32 {sr(sTmp)}, {sr(sTmp3)}, 4
    v_add_u32 v13, {sr(sTmp)}, v13
    s_waitcnt lgkmcnt(0)
    global_load_dwordx4 v[12:15], v13, s[64:65]
    s_waitcnt vmcnt(0)
    v_min_u32 v8, -2, v12
    v_min_u32 v9, -2, v13
    v_min_u32 v10, -2, v14
    v_min_u32 v11, -2, v15
    {nz}:
    s_lshl_b32 {sr(sTmp)}, {sr(sTmp3)}, 7
    s_lshl_b32 {sr(sTmp2)}, {sr(sW)}, 13
    s_add_u32 {sr(sTmp)}, {sr(sTmp)}, {sr(sTmp2)}
    s_add_u32 {sr(sTmp)}, {sr(sTmp)}, {M_OFF}
    buffer_store_dwordx4 v[8:11], {vr(vL16)}, {sr(sWS,4)}, {sr(sTmp)} offen {st}
    s_mov_b64 exec, -1
    """)

def load_weights(a, role):
    vG0, vG1, vGo0, vGo1, vTq, vTo = 48, 49, 50, 51, 52, 53
    ring0 = 0 if role == "A" else 65536
    a(f"""
    v_lshrrev_b32 v1, 4, {vr(vL16)}            ; lane
    v_lshrrev_b32 v2, 4, v1
    v_and_b32 v3, 15, v1
    v_and_b32 v4, 1, v2
    v_lshlrev_b32 v4, 2, v4
    v_xor_b32 v3, v3, v4
    v_lshlrev_b32 v3, 4, v3
    v_xor_b32 v4, 128, v3                      ; j odd
    v_lshl_add_u32 {vr(vG0)}, v2, 13, v3
    v_lshl_add_u32 {vr(vG1)}, v2, 13, v4
    v_lshl_add_u32 {vr(vGo0)}, v2, 10, v3
    v_lshl_add_u32 {vr(vGo1)}, v2, 10, v4
    v_bfe_u32 v2, v1, 2, 1                     ; rr&1
    v_bfe_u32 v3, v1, 3, 1                     ; rr>>1
    v_bfe_u32 v4, v1, 4, 1                     ; gB&1
    v_bfe_u32 v5, v1, 5, 1                     ; gB>>1
    v_and_b32 v6, 3, v1                        ; c
    v_lshl_add_u32 v7, v4, 1, v2               ; f
    v_xor_b32 v7, {sr(sW)}, v7
    v_lshlrev_b32 v7, 6, v7                    ; (w^f)*64
    v_lshl_add_u32 v8, v4, 2, v2
    v_lshl_add_u32 v9, v3, 3, v8
    v_lshl_add_u32 v9, v5, 4, v9
    v_lshl_add_u32 {vr(vTq)}, v9, 8, v7
    v_lshrrev_b32 v10, 1, v6
    v_lshl_add_u32 {vr(vTq)}, v10, 5, {vr(vTq)}
    v_and_b32 v10, 1, v6
    v_lshl_add_u32 {vr(vTq)}, v10, 3, {vr(vTq)}
    v_lshl_add_u32 v9, v5, 2, v2
    v_lshl_add_u32 v9, v4, 3, v9
    v_lshl_add_u32 v7, v5, 1, v2
    v_xor_b32 v7, {sr(sW)}, v7
    v_lshlrev_b32 v7, 6, v7
    v_lshl_add_u32 {vr(vTo)}, v9, 8, v7
    v_lshl_add_u32 {vr(vTo)}, v3, 5, {vr(vTo)}
    v_lshl_add_u32 {vr(vTo)}, v6, 3, {vr(vTo)}
    v_add_u32 {vr(vTq)}, {ring0}, {vr(vTq)}
    v_add_u32 {vr(vTo)}, {ring0}, {vr(vTo)}
    s_load_dwordx4 s[64:67], s[0:1], {A_WQ if role == "A" else A_WV}
    s_lshl_b32 s88, {sr(sH)}, 8
    s_lshl_b32 s90, {sr(sW)}, 17
    s_add_u32 s88, s88, s90                    ; h*256 + w*16 rows
    s_lshl_b32 s89, {sr(sH)}, 17
    s_lshl_b32 s90, {sr(sW)}, 14
    s_add_u32 s89, s89, s90
    s_lshl_b32 s92, {sr(sW)}, 12
    s_add_u32 s92, s92, {ring0}
    s_waitcnt lgkmcnt(0)
    """)
    for n in range(2):
        r = 72 + 4 * n
        a(f"s_mov_b32 {sr(r)}, {sr(64+2*n)}\ns_mov_b32 {sr(r+1)}, {sr(65+2*n)}\ns_mov_b32 {sr(r+2)}, {4*MB}\ns_mov_b32 {sr(r+3)}, 0x20000")
    if role == "A":
        ch = [("q", i) for i in range(8)] + [("k", i) for i in range(8)]; srd = {"q": 72, "k": 76}
    else:
        ch = [("o", (p, c)) for p in range(4) for c in range(2)] + [("v", i) for i in (4, 5, 6, 7, 0, 1, 2, 3)]; srd = {"v": 72, "o": 76}
    def issue(n):
        m, i = ch[n]
        if m == "o":
            a(f"s_add_u32 s91, s89, {i[0]*256 + i[1]*64*1024}"); step = 4 * 1024; vg = (vGo0, vGo1)
        else:
            a(f"s_add_u32 s91, s88, {i * 64 * 8192}"); step = 4 * 8192; vg = (vG0, vG1)
        for j in range(4):
            a(f"s_add_u32 m0, s92, {(n % 4) * 16384 + j * 1024}")
            a(f"buffer_load_dwordx4 {vr(vg[j&1])}, {sr(srd[m],4)}, s91 offen lds")
            if j < 3: a(f"s_add_u32 s91, s91, {step}")
    def tmp(m, i, t):
        if m == "k": return 32 if i < 4 else (i - 4) * 8
        return (i & 1) * 16 + t * 8
    def writeback(m, i):
        for t in ((0,) if m == "k" else (0, 1)):
            for h in range(2):
                va, off = k_addr(i, h) if m == "k" else v_addr(i, t, h)
                a(f"ds_write_b128 {vr(va)}, {vr(tmp(m,i,t)+4*h,4)} offset:{off}")
    yield_points = []
    for n in range(3): issue(n)
    yield
    for n in range(16):
        m, i = ch[n]
        a(f"s_waitcnt vmcnt({4*min(2, 15-n)}) lgkmcnt(0)\ns_barrier")
        if n + 3 < 16: issue(n + 3)
        if n > 0 and ch[n-1][0] == "v" and ch[n-1][1] < 4: writeback(*ch[n-1])
        base = (n % 4) * 16384
        for t in range(2):
            loc = wloc(m, i, t) or ("v", tmp(m, i, t))
            for aa in range(2):
                for b in range(2):
                    if m == "o": off = base + (32 * t + 16 * aa + 2 * b) * 256; va = vTo
                    else: off = base + (32 * aa + 2 * b) * 256 + t * 16; va = vTq
                    a(f"ds_read_b64_tr_b16 {rstr(loc, 2, 4*aa+2*b)}, {vr(va)} offset:{off}")
        if m == "k" and i < 4:
            a("s_waitcnt lgkmcnt(0)"); writeback(m, i)
    a("s_waitcnt lgkmcnt(0)\ns_barrier")
    if role == "A":
        for i in range(4, 8): writeback("k", i)
    else:
        writeback("v", 3)
    a("s_waitcnt lgkmcnt(0)")
    yield

def wrap_add(a, r, inc, bits, lo):
    field = ((1 << bits) - 1) << lo
    a(f"s_add_u32 {sr(sTmp)}, {sr(r)}, {inc}")
    a(f"s_and_b32 {sr(sTmp)}, {sr(sTmp)}, {hex(field)}")
    a(f"s_andn2_b32 {sr(r)}, {sr(r)}, {hex(field)}")
    a(f"s_or_b32 {sr(r)}, {sr(r)}, {sr(sTmp)}")

def init_scalars(a):
    a(f"""
    s_and_b32 {sr(sTmp)}, {sr(sS)}, {RING-1}
    s_lshl_b32 {sr(sM0)}, {sr(sTmp)}, 13
    s_add_u32 {sr(sM0)}, {sr(sM0)}, {M_OFF}
    s_add_u32 {sr(sM1)}, {sr(sM0)}, 4096
    s_lshl_b32 {sr(sTmp2)}, {sr(sH)}, 7
    s_and_b32 {sr(sTmp3)}, {sr(sW)}, 1
    s_lshl_b32 {sr(sMst)}, {sr(sTmp3)}, 12
    s_add_u32 {sr(sMst)}, {sr(sMst)}, {sr(sM0)}
    s_add_u32 {sr(sMst)}, {sr(sMst)}, {sr(sTmp2)}      ; M + slot + (w&1)*4096 + h*128
    s_mov_b32 {sr(sMr)}, {sr(sMst)}
    s_mov_b32 {sr(sTmp)}, {P_OFF}
    s_add_u32 {sr(sP)}, {sr(sTmp)}, {sr(sTmp2)}
    s_lshl_b32 {sr(sTmp2)}, {sr(sW)}, 14
    s_add_u32 {sr(sP)}, {sr(sP)}, {sr(sTmp2)}
    s_add_u32 {sr(sP+1)}, {sr(sP)}, 0x10000
    s_add_u32 {sr(sP+2)}, {sr(sP)}, 0x20000
    s_add_u32 {sr(sP+3)}, {sr(sP)}, 0x30000
    s_lshl_b32 {sr(sTmp2)}, {sr(sH)}, 12
    s_add_u32 {sr(sH1a)}, {sr(sTmp)}, {sr(sTmp2)}
    s_lshl_b32 {sr(sTmp3)}, {sr(sTmp3)}, 17
    s_add_u32 {sr(sH1a)}, {sr(sH1a)}, {sr(sTmp3)}      ; P + slot + (w&1)*128K + h*4096
    s_mov_b32 {sr(sE)}, 0
    s_mov_b32 {sr(sPk)}, {DUMMY_OFF}
    s_mov_b32 {sr(sPv)}, {DUMMY_OFF}
    s_lshl_b32 {sr(sTmp2)}, {sr(sW)}, 11
    s_lshl_b32 {sr(sTmp)}, {sr(sS)}, 5
    s_add_u32 {sr(sTmp)}, {sr(sTmp)}, {sr(sH)}
    s_lshl_b32 {sr(sKx)}, {sr(sTmp)}, 13
    s_add_u32 {sr(sKx)}, {sr(sKx)}, {sr(sTmp2)}
    s_lshr_b32 {sr(sVm)}, {sr(sKx)}, 1
    s_add_u32 {sr(sVt)}, {sr(sKx)}, {VT_OFF}
    s_add_u32 {sr(sKm)}, {sr(sVm)}, {KM_OFF}
    s_add_u32 {sr(sVm)}, {sr(sVm)}, {VM_OFF}
    """)
    assert KX_OFF == 0
    wrap_add(a, sMst, 8192, 2, 13)

def kv_load_list(a):
    adv = "" if DBG.get("kvsame") else f"\ns_add_u32 {sr(sKx)}, {sr(sKx)}, {32*8192}\ns_add_u32 {sr(sVt)}, {sr(sVt)}, {32*8192}"
    fl = DBG.get("kvflags", "")
    return [lambda: a(f"buffer_load_dwordx4 {vr(KVN,4)}, {vr(vL16)}, {sr(sWS,4)}, {sr(sKx)} offen {fl}"),
            lambda: a(f"buffer_load_dwordx4 {vr(KVN+4,4)}, {vr(vL16)}, {sr(sWS,4)}, {sr(sKx)} offen offset:1024 {fl}"),
            lambda: a(f"buffer_load_dwordx4 {vr(KVN+8,4)}, {vr(vL16)}, {sr(sWS,4)}, {sr(sVt)} offen {fl}"),
            lambda: a(f"buffer_load_dwordx4 {vr(KVN+12,4)}, {vr(vL16)}, {sr(sWS,4)}, {sr(sVt)} offen offset:1024 {fl}" + adv)]
def kv_load(a):
    for g in kv_load_list(a): g()
def kv_write(a):
    for j in range(4): a(f"ds_write_b128 {vr(vVx)}, {vr(KVN+4*j,4)} offset:{L_KV + (j>>1)*8192 + (j&1)*512}")

def prep_A(a):
    rd_k(a, 0); rd_k(a, 1)
    for r in range(RG, RG + 16, 2): a(f"v_mov_b64 {vr(r,2)}, 0")
def prep_B(a):
    rd_v(a, 0, 0); rd_v(a, 0, 1)
    if DBG.get('kvstage', 1): rd_v(a, 1, 0); rd_v(a, 1, 1)
    for r in range(AV, AV + 8, 2): a(f"v_mov_b64 {vr(r,2)}, 0")

def helpers(a):
    cvt = lambda d, s0, s1: a(f"v_cvt_pk_bf16_f32 {vr(d)}, {vr(s0)}, {vr(s1)}")
    mf = lambda d, A, B, C: a(f"v_mfma_f32_16x16x32_bf16 {vr(d,4)}, {vr(A,4)}, {vr(B,4)}, {C}")
    mf16 = lambda d, A, B: a(f"v_mfma_f32_16x16x16_bf16 {vr(d,4)}, {vr(A,2)}, {vr(B,2)}, {vr(d,4)}")
    pk = lambda op, d, x, y: a(f"v_pk_{op}_f32 {vr(d,2)}, {vr(x,2)}, {vr(y,2)}")
    return cvt, mf, mf16, pk

def pause(a, c):
    n = c // 4
    while n > 0:
        a(f"s_nop {min(n,16)-1}"); n -= 16

def spin(a, fail, spinmax, cnt=None):
    a(f"s_add_u32 {sr(sSpin)}, {sr(sSpin)}, 1")
    if cnt is not None and DBG.get("count"): a(f"s_add_u32 {sr(cnt)}, {sr(cnt)}, 1")
    a(f"s_cmp_gt_u32 {sr(sSpin)}, {spinmax}\ns_cbranch_scc1 {fail}")

def loop_A(a, st, pub, fail, done, opt):
    cvt, mf, mf16, pk = helpers(a)
    spinmax = opt.get("spinmax", 1 << 22)
    CMP = "v_cmp_lt_u32" if opt.get("solo") else "v_cmp_eq_u32"
    acc = {("q", 0): RG, ("k", 0): RG + 4, ("q", 1): RG + 8, ("k", 1): RG + 12}
    def W(m, i, t):
        loc = wloc(m, i, t)
        smf(a, acc[(m, t)], MS + 4 * (i & 3), rstr(loc) if loc else vr(ST + 8 * (i & 1), 8))
    rd_m = lambda i: a(f"ds_read_b128 {vr(MS+4*(i&3),4)}, {vr(vL16)} offset:{L_M + 1024*i}")
    top = a.newlabel("LstepA")
    a.label(top)
    a("s_setprio 2\ns_waitcnt lgkmcnt(0)\ns_barrier")
    if opt.get("stamps"): a(f"s_memtime {sr(sSt,2)}")
    for i in range(4): rd_m(i)
    q = ["m0", "m1", "m2", "m3"]
    def need(*tags):
        idx = max([q.index(t) for t in tags if t in q] + [-1])
        if idx >= 0:
            a(f"s_waitcnt lgkmcnt({len(q)-1-idx})"); del q[:idx + 1]
    def RK(i): rd_k(a, i); q.extend([f"k{i}", f"k{i}"])
    def RM(i): rd_m(i); q.append(f"m{i}")
    def needk(i):
        t = f"k{i}"
        if t in q:
            idx = len(q) - 1 - q[::-1].index(t)
            a(f"s_waitcnt lgkmcnt({len(q)-1-idx})"); del q[:idx + 1]
    b2at = opt.get("b2at", 2)
    for i in range(6):
        need(f"m{i}")
        W("q", i, 0)
        needk(i)
        W("k", i, 0)
        RK(i + 2)
        W("q", i, 1)
        if i == 5:
            a(f"ds_read_b128 {vr(MS,4)}, {vr(vW16)} offset:{L_KV}"); q.append("kx0")
        W("k", i, 1)
        if i == b2at:
            a("s_barrier")
            for j in range(4, 5 + b2at): RM(j)
        elif i > b2at and i + 4 < 8: RM(i + 4)
    a(f"ds_read_b128 {vr(MS+4,4)}, {vr(vW16)} offset:{L_KV+4096}"); q.append("kx1")
    need("m6"); W("q", 6, 0); needk(6); W("k", 6, 0)
    need("m7"); W("q", 7, 0); needk(7); W("k", 7, 0)
    W("q", 6, 1); W("k", 6, 1)
    cvt(RG, RG, RG + 1)
    W("q", 7, 1)
    cvt(RG + 1, RG + 2, RG + 3)
    W("k", 7, 1)
    cvt(RG + 2, RG + 4, RG + 5); cvt(RG + 3, RG + 6, RG + 7)
    cvt(RG + 8, RG + 8, RG + 9); cvt(RG + 9, RG + 10, RG + 11)
    mf(RG + 4, RG, SELT, "0")
    cvt(RG + 10, RG + 12, RG + 13); cvt(RG + 11, RG + 14, RG + 15)
    mf(RG + 12, RG + 8, SELT, "0")
    need("kx0", "kx1")
    cvt(RG, RG + 4, RG + 5); cvt(RG + 1, RG + 6, RG + 7)
    cvt(RG + 2, RG + 12, RG + 13); cvt(RG + 3, RG + 14, RG + 15)
    X = RG; S0 = RG + 4; D1 = RG + 8; DM = RG + 12
    mf(D1, MS + 4, X, "0"); mf(S0, MS, X, "0"); mf(DM, X, X, "0")
    VX = MS
    a(f"""
    ds_read_b128 {vr(VX,4)}, {vr(vW16)} offset:{L_KV+8192}
    ds_read_b64 {vr(VX+6,2)}, {vr(vW16)} offset:{L_KV+12288}
    ds_read_b64 {vr(VX+4,2)}, {vr(vW16)} offset:{L_KV+12288+8}
    """)
    hi = lambda d, s: a(f"v_mov_b32_dpp {vr(d)}, {vr(s)} row_ror:8 row_mask:0xf bank_mask:0xc")
    for r in range(4): hi(S0 + r, D1 + r)
    a(f"ds_write_b128 {vr(vW16)}, {vr(S0,4)} offset:{L_SX}")
    hi(DM, DM + 2); hi(DM + 1, DM + 3)
    a(f"ds_write_b64 {vr(vSmw)}, {vr(DM,2)} offset:{L_SM}")
    a("s_waitcnt lgkmcnt(0)\ns_barrier")
    PMB = MS + 8
    for j, va in enumerate((vX1, vX2, vX3)):
        a(f"ds_read_b128 {vr(ST+4*j,4)}, {vr(va)} offset:{L_SX}")
        if j == 0:
            a(f"ds_read2_b64 {vr(PMB,4)}, {vr(vSm)} offset0:0 offset1:64")
        if j == 1:
            a(f"ds_read2_b64 {vr(PMB+4,4)}, {vr(vSm)} offset0:128 offset1:192")
    a(f"s_cmp_eq_u32 {sr(sS)}, {sr(sEnd)}\ns_cbranch_scc1 {done}_pubA")
    S4 = RG + 8
    a("s_waitcnt lgkmcnt(4)")
    pk("add", S0, S0, ST); pk("add", S0 + 2, S0 + 2, ST + 2)
    a("s_waitcnt lgkmcnt(2)")
    pk("add", S4, PMB, PMB + 2)
    pk("add", S0, S0, ST + 4); pk("add", S0 + 2, S0 + 2, ST + 6)
    a("s_waitcnt lgkmcnt(0)")
    pk("add", PMB + 4, PMB + 4, PMB + 6)
    pk("add", S0, S0, ST + 8); pk("add", S0 + 2, S0 + 2, ST + 10)
    pk("add", S4, S4, PMB + 4)
    MXv, MY, MZ = RG + 10, RG + 11, RG + 12
    B3B = f"s_barrier\nds_read_b128 {vr(ST+12,4)}, {vr(vW16)} offset:{L_KV}"
    a(f"""
    v_max3_f32 {vr(MXv)}, {vr(S0)}, {vr(S0+1)}, {vr(S0+2)}
    v_max3_f32 {vr(MXv)}, {vr(MXv)}, {vr(S0+3)}, {vr(S0+4)}
    v_max_f32 {vr(MXv)}, {vr(MXv)}, {vr(S0+5)}
    v_max_f32_dpp {vr(MY)}, {vr(MXv)}, {vr(MXv)} row_ror:8 row_mask:0xf bank_mask:0xf
    v_max_f32_dpp {vr(MXv)}, {vr(MXv)}, {vr(MXv)} row_ror:8 row_mask:0xf bank_mask:0xf
    v_permlane16_swap_b32 {vr(MXv)}, {vr(MY)}
    v_max_f32 {vr(MZ)}, {vr(MXv)}, {vr(MY)}
    v_max_f32 {vr(MXv)}, {vr(MXv)}, {vr(MY)}
    {B3B if opt.get('b3b', 0) == 0 else ''}
    v_permlane32_swap_b32 {vr(MXv)}, {vr(MZ)}
    v_max_f32 {vr(MXv)}, {vr(MXv)}, {vr(MZ)}
    v_mul_f32 {vr(MXv)}, {sr(sC)}, {vr(MXv)}
    """)
    VP = ST + 12
    for j in range(3):
        a(f"v_pk_fma_f32 {vr(S0+2*j,2)}, {vr(S0+2*j,2)}, {sr(sC,2)}, {vr(MXv,2)} op_sel_hi:[1,1,0] neg_lo:[0,0,1] neg_hi:[0,0,1]")
    PX, PM = RG + 12, RG + 10
    dppmov = lambda d, s: a(f"v_mov_b32_dpp {vr(d)}, {vr(s)} row_ror:8 row_mask:0xf bank_mask:0xf")
    ex = lambda j: a(f"v_exp_f32 {vr(S0+j)}, {vr(S0+j)}")
    ex(0); ex(1); ex(2); ex(3)
    if opt.get('b3b', 0) == 1: a(B3B)
    cvt(PX, S0, S0 + 1); cvt(PX + 1, S0 + 2, S0 + 3)
    ex(4)
    dppmov(PX + 2, PX); dppmov(PX + 3, PX + 1)
    ex(5)
    DA, DB = MS + 8, MS + 12
    SM_, SN, SO = ST, ST + 1, ST + 2
    a(f"v_add_f32 {vr(SM_)}, {vr(S0)}, {vr(S0+1)}")
    cvt(PM, S0 + 4, S0 + 5)
    mf(DA, VX, PX, "0")
    a(f"v_add_f32 {vr(SN)}, {vr(S0+4)}, {vr(S0+5)}")
    dppmov(PM + 1, PM)
    mf(DB, VX + 4, PX, "0")
    a(f"v_add_f32 {vr(SO)}, {vr(S0+2)}, {vr(S0+3)}")
    a(f"v_fmac_f32 {vr(SM_)}, 0.5, {vr(SN)}")
    a("s_waitcnt lgkmcnt(0)")
    mf16(DA, VP, PM)
    a(f"v_add_f32 {vr(SM_)}, {vr(SM_)}, {vr(SO)}")
    mf16(DB, VP + 2, PM)
    a(f"""
    v_add_f32_dpp {vr(SN)}, {vr(SM_)}, {vr(SM_)} row_ror:8 row_mask:0xf bank_mask:0xf
    v_add_f32_dpp {vr(SM_)}, {vr(SM_)}, {vr(SM_)} row_ror:8 row_mask:0xf bank_mask:0xf
    v_permlane16_swap_b32 {vr(SM_)}, {vr(SN)}
    v_add_f32 {vr(SO)}, {vr(SM_)}, {vr(SN)}
    v_add_f32 {vr(SM_)}, {vr(SM_)}, {vr(SN)}
    v_cndmask_b32 {vr(DA)}, {vr(DB)}, {vr(DA)}, {sr(sExLo,2)}
    v_cndmask_b32 {vr(DA+1)}, {vr(DB+1)}, {vr(DA+1)}, {sr(sExLo,2)}
    v_permlane32_swap_b32 {vr(SM_)}, {vr(SO)}
    v_add_f32 {vr(SM_)}, {vr(SM_)}, {vr(SO)}
    v_rcp_f32 {vr(SM_)}, {vr(SM_)}
    v_cndmask_b32 {vr(DA+2)}, {vr(DB+2)}, {vr(DA+2)}, {sr(sExLo,2)}
    v_cndmask_b32 {vr(DA+3)}, {vr(DB+3)}, {vr(DA+3)}, {sr(sExLo,2)}
    v_pk_mul_f32 {vr(DA,2)}, {vr(DA,2)}, {vr(SM_,2)} op_sel_hi:[1,0]
    v_pk_mul_f32 {vr(DA+2,2)}, {vr(DA+2,2)}, {vr(SM_,2)} op_sel_hi:[1,0]
    """)
    cvt(DA, DA, DA + 1); cvt(DA + 1, DA + 2, DA + 3)
    a(f"""
    ds_write_b64 {vr(vOw)}, {vr(DA,2)} offset:{L_O}
    s_add_u32 {sr(sS)}, {sr(sS)}, 1
    s_add_u32 {sr(sKm)}, {sr(sKm)}, {0 if DBG.get('pubsame') else 32*4096}
    s_waitcnt lgkmcnt(0)
    s_barrier
    s_setprio 1
    s_nop 15
    s_nop 15
    ds_write_b128 {vr(vW16)}, {vr(X,4)} offset:{L_KV + 4096}
    """)
    nored = a.newlabel("Lnored"); join = a.newlabel("LjoinA"); w1 = a.newlabel("Lw1")
    SELR, RA = RG + 8, RG + 4
    def h1loads():
        for i in range(4):
            a(f"buffer_load_dwordx4 {vr(MS+4*i,4)}, {vr(vL16)}, {sr(sWS,4)}, {sr(sH1a)} offen offset:{i*1024} sc1")
    def side():
        rd_k(a, 0); rd_k(a, 1)
        for r in range(RG + 8, RG + 16, 2): a(f"v_mov_b64 {vr(r,2)}, 0")
    def reduce(tag):
        p1 = a.newlabel("Lp1"); p1r = a.newlabel("Lp1r"); e1 = a.newlabel("Le1"); fin_ = a.newlabel("Lrf")
        a.label(p1)
        a(f"s_cmp_eq_u32 {sr(sE)}, 0\ns_cbranch_scc0 {e1}")
        for e in range(2):
            if e == 1: a.label(e1)
            for i in range(4):
                a(f"s_waitcnt vmcnt({3-i})")
                x, y = vr(MS + 4 * i), vr(MS + 4 * i + 2)
                if i == 0: a(f"{'v_or_b32' if e == 0 else 'v_and_b32'} {vr(T0)}, {x}, {y}")
                elif e == 0: a(f"v_or3_b32 {vr(T0)}, {vr(T0)}, {x}, {y}")
                else: a(f"v_bitop3_b32 {vr(T0)}, {vr(T0)}, {x}, {y} bitop3:0x80")
                mf(RA, MS + 4 * i, SELR, "0" if i == 0 else vr(RA, 4))
            if e == 0: a(f"s_branch {fin_}")
        a.label(fin_)
        a(f"""
        v_and_b32 {vr(T0)}, 1, {vr(T0)}
        {'v_cmp_gt_u32 vcc, 0,' if opt.get('solo') else f'v_cmp_ne_u32 vcc, {sr(sE)},'} {vr(T0)}
        s_cbranch_vccnz {p1r}
        v_permlane32_swap_b32 {vr(RA)}, {vr(RA+2)}
        v_permlane32_swap_b32 {vr(RA+1)}, {vr(RA+3)}
        v_pk_add_f32 {vr(RA,2)}, {vr(RA,2)}, {vr(RA+2,2)}
        v_cvt_pk_bf16_f32 {vr(RA)}, {vr(RA)}, {vr(RA+1)}
        v_min_u32 {vr(RA)}, -2, {vr(RA)}
        buffer_store_dword {vr(RA)}, {vr(T1)}, {sr(sWS,4)}, {sr(sMst)} offen {st}
        """)
        if tag == 0: a("s_barrier")
        a(f"""
        v_mov_b32 {vr(T0)}, -1
        buffer_store_dword {vr(T0)}, {vr(T1)}, {sr(sWS,4)}, {sr(sMr)} offen {st}
        """)
        return p1, p1r
    a(f"""
    ds_read_b128 {vr(SELR,4)}, {vr(vL16)} offset:{L_SELR}
    s_cmp_eq_u32 {sr(sW)}, 0
    s_cbranch_scc0 {w1}
    s_waitcnt lgkmcnt(0)
    s_barrier
    """)
    pause(a, opt.get("d0", 160))
    h1loads()
    r0 = reduce(0)
    a.label(join)
    prep_A(a)
    a(f"s_mov_b32 {sr(sMr)}, {sr(sMst)}\ns_xor_b32 {sr(sE)}, {sr(sE)}, 1")
    wrap_add(a, sMst, 8192, 2, 13)
    if opt.get("stamps"): opt["dump"](a)
    a.drain()
    a(f"s_branch {top}")
    a.label(w1)
    a(f"s_waitcnt lgkmcnt(0)\ns_barrier")
    dd = sorted([(opt.get("d1", 256), 1), (opt.get("d2", 1000), 2), (opt.get("d3", 1001), 3)])
    go = a.newlabel("Lgo"); prev = 0
    for d, w in dd:
        if d >= 1000:
            a(f"s_branch {nored}"); break
        pause(a, d - prev); prev = d
        if (d, w) != dd[-1]: a(f"s_cmp_eq_u32 {sr(sW)}, {w}\ns_cbranch_scc1 {go}")
    a(f"s_branch {go}")
    a.label(r0[1])
    if DBG.get("count"): a(f"s_add_u32 {sr(sC1)}, {sr(sC1)}, 1")
    a.label(go)
    h1loads()
    a("s_barrier")
    r1 = reduce(1)
    a(f"s_branch {join}")
    a.label(nored)
    a(f"s_barrier\ns_branch {join}")
    a.label(r1[1])
    h1loads()
    spin(a, fail, spinmax, sC1)
    a(f"s_branch {r1[0]}")
    a.label(f"{done}_pubA")
    a(f"""
    s_mov_b64 exec, {sr(sExHi,2)}
    buffer_store_dwordx4 {vr(X,4)}, {vr(vL16)}, {sr(sWS,4)}, {sr(sKm)} offen {pub}
    s_mov_b64 exec, -1
    s_branch {done}
    """)

def loop_B(a, st, pub, fail, done, opt):
    cvt, mf, mf16, pk = helpers(a)
    spinmax = opt.get("spinmax", 1 << 22)
    CMP = "v_cmp_lt_u32" if opt.get("solo") else "v_cmp_eq_u32"
    ld0 = f"buffer_load_dwordx4 {vr(XB,4)}, {vr(vW16)}, {sr(sWS,4)}, {sr(sM0)} offen sc1"
    ld1 = f"buffer_load_dwordx4 {vr(XB+4,4)}, {vr(vW16)}, {sr(sWS,4)}, {sr(sM1)} offen sc1"
    top = a.newlabel("LstepB")
    a(f"s_branch {top}")
    a.label(f"{top}_b7")
    a("s_setprio 3\ns_barrier")
    a.label(top)
    if opt.get("stamps"): a(f"s_memtime {sr(sSt,2)}")
    D = opt.get("depth", 3)
    pause(a, opt.get("dpoll", 64))
    for k in range(D - 1):
        a(ld0)
        pause(a, opt.get("gap", 80))
    p2 = a.newlabel("Lp2"); p2ok = a.newlabel("Lp2ok")
    U = opt.get("unroll", 4)
    a.label(p2)
    spin(a, fail, spinmax)
    for u in range(U):
        a(f"""
        {ld0}
        s_waitcnt vmcnt({D-1})
        v_max3_u32 {vr(T0)}, {vr(XB)}, {vr(XB+1)}, {vr(XB+2)}
        v_max_u32 {vr(T0)}, {vr(T0)}, {vr(XB+3)}
        {CMP} vcc, -1, {vr(T0)}
        """)
        if opt.get("specw", 1): a(f"ds_write_b128 {vr(vW16)}, {vr(XB,4)} offset:{L_M}")
        a(f"s_cbranch_vccz {p2ok}" if u < U - 1 else f"s_cbranch_vccnz {p2}")
        if u < U - 1: pause(a, opt.get("pgap", 0))
    a.label(p2ok)
    if not opt.get("specw", 1): a(f"ds_write_b128 {vr(vW16)}, {vr(XB,4)} offset:{L_M}")
    kvstage = DBG.get("kvstage", 1)
    HK, HV = XB + 8, XB + 12
    q = []
    def RM(i, sl): a(f"ds_read_b128 {vr(XB+4*sl,4)}, {vr(vL16)} offset:{L_M + 1024*i}"); q.append(f"m{i}"); slots[i] = sl
    def RV(i, t): rd_v(a, i, t); q.extend([f"v{i}{t}"] * 2)
    def need(*tags):
        idx = max([len(q) - 1 - q[::-1].index(t) for t in tags if t in q] + [-1])
        if idx >= 0:
            a(f"s_waitcnt lgkmcnt({len(q)-1-idx})"); del q[:idx + 1]
    slots = {}
    b3at = opt.get("b3at", 14)
    cnt = [0]
    def VS(i, t):
        if cnt[0] == b3at: a("s_barrier")
        cnt[0] += 1
        need(f"m{i}", f"v{i}{t}")
        loc = wloc("v", i, t)
        smf(a, AV + 4 * t, XB + 4 * slots[i], rstr(loc) if loc else vr(vstage(i) + 8 * t, 8))
    ld1b = f"buffer_load_dwordx4 {vr(XB,4)}, {vr(vW16)}, {sr(sWS,4)}, {sr(sM1)} offen sc1"
    def pubs():
        a(f"""
        s_mov_b64 exec, {sr(sExHi,2)}
        buffer_store_dwordx4 {vr(HK,4)}, {vr(vL16)}, {sr(sWS,4)}, {sr(sPk)} offen {pub}
        s_mov_b64 exec, -1
        buffer_store_dwordx4 {vr(HV,4)}, {vr(vL16)}, {sr(sWS,4)}, {sr(sPv)} offen {pub}
        """)
    a(f"""
    {ld1}
    s_waitcnt lgkmcnt(0)
    s_barrier
    {ld1b}
    """)
    pubs()
    later = 2
    RM(0, 2); RM(1, 3)
    p3 = a.newlabel("Lp3"); p3r = a.newlabel("Lp3r")
    a(f"""
    s_waitcnt vmcnt({later+1})
    ds_write_b128 {vr(vW16)}, {vr(XB+4,4)} offset:{L_M+4096}
    v_max3_u32 {vr(T0)}, {vr(XB+4)}, {vr(XB+5)}, {vr(XB+6)}
    v_max_u32 {vr(T0)}, {vr(T0)}, {vr(XB+7)}
    {CMP} vcc, -1, {vr(T0)}
    s_cbranch_vccnz {p3r}
    """)
    a.label(p3)
    kvl = kv_load_list(a)
    if not kvstage:
        for _ in range(opt.get("kvpre", 2)): kvl.pop(0)()
    a("s_waitcnt lgkmcnt(0)\ns_barrier")
    q.clear()
    if kvstage: VS(0, 0); VS(0, 1)
    a("s_setprio 0")
    for g in kvl: g()
    q.clear()
    if kvstage:
        RM(2, 2); RM(5, 1)
        a("s_waitcnt vmcnt(6)")
        RM(4, 0)
        VS(1, 0); RV(2, 0); VS(1, 1); RV(2, 1); RM(3, 3)
        VS(4, 0); VS(4, 1); RM(6, 0)
        VS(5, 0); VS(5, 1); RM(7, 1)
        VS(2, 0); RV(3, 0); VS(2, 1); RV(3, 1)
        VS(6, 0); VS(6, 1); VS(7, 0); VS(7, 1); VS(3, 0); VS(3, 1)
    else:
        RM(5, 1)
        a("s_waitcnt vmcnt(6)")
        RM(4, 0)
        VS(0, 0); RV(1, 0); VS(0, 1); RV(1, 1); RM(2, 2)
        VS(4, 0); VS(4, 1); RM(6, 0)
        VS(1, 0); RV(2, 0); VS(1, 1); RV(2, 1); RM(3, 3)
        VS(5, 0); VS(5, 1); RM(7, 1)
        VS(2, 0); RV(3, 0); VS(2, 1); RV(3, 1)
        VS(6, 0); VS(6, 1); VS(7, 0); VS(7, 1); VS(3, 0); VS(3, 1)
    if b3at >= 16: a("s_barrier")
    cvt(AV, AV, AV + 1); cvt(AV + 1, AV + 2, AV + 3)
    cvt(AV + 2, AV + 6, AV + 7); cvt(AV + 3, AV + 4, AV + 5)
    adv = 0 if DBG.get('pubsame') else 32 * 4096
    a(f"""
    ds_write_b128 {vr(vW16)}, {vr(AV,4)} offset:{L_KV}
    s_mov_b32 {sr(sPk)}, {sr(sKm)}
    s_mov_b32 {sr(sPv)}, {sr(sVm)}
    s_add_u32 {sr(sVm)}, {sr(sVm)}, {adv}
    s_add_u32 {sr(sKm)}, {sr(sKm)}, {adv}
    s_cmp_eq_u32 {sr(sS)}, {sr(sEnd)}
    s_cbranch_scc1 {done}_pubB
    s_waitcnt lgkmcnt(0)
    s_barrier
    """)
    for r in range(0, 16, 2): a(f"v_mov_b64 {vr(ZB+r,2)}, 0")
    a(f"""
    s_add_u32 {sr(sS)}, {sr(sS)}, 1
    s_setprio 3
    s_barrier
    """)
    for w in range(4): a(f"ds_read_b128 {vr(XB+4*w,4)}, {vr(vOr)} offset:{L_O + w*512}")
    WO = lambda p, k: smf(a, ZB + 4 * p, XB + 4 * k, rstr(wloc("o", (p, k >> 1), k & 1)))
    def fin(p):
        d = ZB + 4 * p
        return [lambda: cvt(d, d, d + 1), lambda: cvt(d + 1, d + 2, d + 3),
                lambda: a(f"v_and_or_b32 {vr(d)}, {vr(d)}, -2, {sr(sE)}\nbuffer_store_dwordx2 {vr(d,2)}, {vr(vPst)}, {sr(sWS,4)}, {sr(sP+p)} offen {st}")]
    if opt.get("woseq", 1) == 0:
        seq = ["00", "10", "01", "11", "02", "20", "03", "12", "21", "13", "30", "22", "31", "23", "32", "33"]
        after = {8: [(0, 0)], 9: [(0, 1)], 10: [(0, 2)], 11: [(1, 0)], 12: [(1, 1)], 13: [(1, 2)]}
    else:
        seq = ["00", "10", "01", "11", "02", "12", "03", "13", "20", "30", "21", "31", "22", "23", "32", "33"]
        after = {8: [(0, 0), (0, 1)], 9: [(0, 2), (1, 0), (1, 1), (1, 2)]}
    seen = -1
    for n, pk_ in enumerate(seq):
        p, k = int(pk_[0]), int(pk_[1])
        if k > seen: a(f"s_waitcnt lgkmcnt({3-k})"); seen = k
        WO(p, k)
        for (pp, jj) in after.get(n, []): fin(pp)[jj]()
    for g in fin(2) + fin(3): g()
    a("s_barrier")
    a("s_setprio 0")
    def hold_v():
        a(f"v_mov_b64 {vr(HV,2)}, {vr(AV,2)}\nv_mov_b32 {vr(HV+2)}, {vr(AV+3)}\nv_mov_b32 {vr(HV+3)}, {vr(AV+2)}")
    a(f"ds_read_b128 {vr(HK,4)}, {vr(vW16)} offset:{L_KV + 4096}")
    hold_v()
    a("s_waitcnt vmcnt(4)")
    kv_write(a)
    prep_B(a)
    a(f"s_xor_b32 {sr(sE)}, {sr(sE)}, 1")
    wrap_add(a, sM0, 8192, 2, 13)
    a(f"s_add_u32 {sr(sM1)}, {sr(sM0)}, 4096")
    if opt.get("stamps"): opt["dump"](a)
    a.drain()
    a(f"s_branch {top}_b7")
    a.label(p3r)
    p3s = a.newlabel("Lp3s")
    a(f"s_waitcnt vmcnt({later})")
    a.label(p3s)
    a(f"""
    ds_write_b128 {vr(vW16)}, {vr(XB,4)} offset:{L_M+4096}
    v_max3_u32 {vr(T0)}, {vr(XB)}, {vr(XB+1)}, {vr(XB+2)}
    v_max_u32 {vr(T0)}, {vr(T0)}, {vr(XB+3)}
    {CMP} vcc, -1, {vr(T0)}
    s_cbranch_vccz {p3}
    {ld1b}
    """)
    spin(a, fail, spinmax, sC2)
    a(f"s_waitcnt vmcnt(0)\ns_branch {p3s}")
    a.label(f"{done}_pubB")
    hold_v()
    a(f"buffer_store_dwordx4 {vr(HV,4)}, {vr(vL16)}, {sr(sWS,4)}, {sr(sPv)} offen {pub}")
    a(f"s_branch {done}")
```

```python
from asmlib import *
from layout import *
from chain8 import sWS
sWv = 36
sA, sB, sCc, sD = 40, 41, 42, 43
sNs, sOo = 20, 21
sOUT = 8
sWo = 12; sWb = 16
vLn16, vSrc, vTr, vRed, vOut = 2, 3, 4, 5, 6
D = 8
OF = 24
RT = 96
WF = 112
NF = 18

def final_setup(a, ns):
    a(f"""
    s_load_dwordx2 s[8:9], s[0:1], {D_OUT}
    s_load_dwordx2 s[12:13], s[0:1], {A_WO}
    s_load_dwordx2 s[16:17], s[0:1], {B_WO}
    s_mov_b32 s10, {2*MB}
    s_mov_b32 s11, 0x20000
    s_mov_b32 s14, {4*MB}
    s_mov_b32 s15, 0x20000
    s_mov_b32 s18, {512*1024}
    s_mov_b32 s19, 0x20000
    s_mov_b32 {sr(sNs)}, {sr(ns)}
    v_and_b32 v1, 63, v0
    v_lshlrev_b32 {vr(vLn16)}, 4, v1
    v_lshrrev_b32 v7, 2, v1
    v_and_b32 v8, 3, v1
    v_lshlrev_b32 {vr(vSrc)}, 10, v7
    v_lshl_add_u32 {vr(vSrc)}, v8, 4, {vr(vSrc)}
    v_bfe_u32 v7, v1, 2, 2                   ; rr
    v_lshrrev_b32 v9, 5, v1
    v_lshl_add_u32 v7, v9, 2, v7
    v_lshlrev_b32 {vr(vTr)}, 6, v7
    v_bfe_u32 v7, v1, 4, 1
    v_lshl_add_u32 {vr(vTr)}, v7, 5, {vr(vTr)}
    v_and_b32 v7, 1, v1
    v_lshl_add_u32 {vr(vTr)}, v7, 4, {vr(vTr)}
    v_bfe_u32 v7, v1, 1, 1
    v_lshl_add_u32 {vr(vTr)}, v7, 3, {vr(vTr)}
    s_mul_i32 {sr(sD)}, {sr(sWv)}, {18*1024}
    v_add_u32 {vr(vTr)}, {sr(sD)}, {vr(vTr)}
    s_lshl_b32 {sr(sA)}, {sr(sWv)}, 10
    v_add_u32 {vr(vRed)}, {sr(sA)}, {vr(vLn16)}
    v_and_b32 v7, 31, v1
    v_lshlrev_b32 {vr(vOut)}, 10, v7
    v_lshl_add_u32 {vr(vOut)}, v9, 4, {vr(vOut)}
    s_lshr_b32 {sr(sA)}, {sr(sWv)}, 1
    s_lshl_b32 {sr(sA)}, {sr(sA)}, 5
    s_and_b32 {sr(sB)}, {sr(sWv)}, 1
    s_lshl_b32 {sr(sB)}, {sr(sB)}, 3
    s_add_u32 {sr(sA)}, {sr(sA)}, {sr(sB)}
    s_lshl_b32 {sr(sB)}, {sr(sNs)}, 6
    s_add_u32 {sr(sA)}, {sr(sA)}, {sr(sB)}
    v_add_u32 {vr(vOut)}, {sr(sA)}, {vr(vOut)}
    s_waitcnt lgkmcnt(0)
    """)
    for rnd in range(2):
        for i in range(18):
            f = rnd * 18 + i
            if f == 0: a(f"s_lshl_b32 {sr(sA)}, {sr(sWv)}, 19\ns_add_u32 {sr(sA)}, {sr(sA)}, {sr(sB)}")
            elif f == 32: a(f"s_lshl_b32 {sr(sA)}, {sr(sWv)}, 16\ns_add_u32 {sr(sA)}, {sr(sA)}, {sr(sB)}")
            else: a(f"s_add_u32 {sr(sA)}, {sr(sA)}, 16384")
            a(f"s_add_u32 m0, {sr(sD)}, {i*1024}")
            a(f"buffer_load_dwordx4 {vr(vSrc)}, {sr(sWo if f < 32 else sWb,4)}, {sr(sA)} offen lds")
        for i in range(18):
            f = rnd * 18 + i
            a(f"s_waitcnt vmcnt({17-i})")
            for q in range(2):
                a(f"ds_read_b64_tr_b16 {vr(WF+4*f+2*q,2)}, {vr(vTr)} offset:{i*1024 + q*512}")
        a("s_waitcnt lgkmcnt(0)")
    a("s_barrier")

def o_load(a, f, fl):
    if f < 32:
        if f % 4 == 0: a(f"s_add_u32 {sr(sCc)}, {sr(sOo)}, {f*1024}")
        a(f"buffer_load_dwordx4 {vr(OF+4*(f%NF),4)}, {vr(vLn16)}, {sr(sWS,4)}, {sr(sCc)} offen offset:{(f%4)*1024} {fl}")
    else:
        a(f"buffer_load_dwordx4 {vr(OF+4*(f%NF),4)}, {vr(vLn16)}, {sr(sWS,4)}, {sr(sOo+1)} offen offset:{(f-32)*1024} {fl}")

def final_segment(a, seg, fl=""):
    a(f"""
    s_mul_i32 {sr(sOo)}, {sr(seg)}, {O_SEG}
    s_add_u32 {sr(sOo)}, {sr(sOo)}, {O_OFF}
    s_lshl_b32 {sr(sA)}, {sr(sWv)}, 12
    s_add_u32 {sr(sOo+1)}, {sr(sOo)}, {sr(sA)}
    s_add_u32 {sr(sOo+1)}, {sr(sOo+1)}, {256*1024}
    s_lshl_b32 {sr(sA)}, {sr(sWv)}, 15
    s_add_u32 {sr(sOo)}, {sr(sOo)}, {sr(sA)}
    """)
    for f in range(NF): o_load(a, f, fl)
    for f in range(36):
        a(f"s_waitcnt vmcnt({min(NF-1, 35-f)})")
        a(f"v_mfma_f32_32x32x16_bf16 {vr(D,16)}, {vr(WF+4*f,4)}, {vr(OF+4*(f%NF),4)}, {'0' if f == 0 else vr(D,16)}")
        if f + NF < 36:
            if (f + NF) % 4 != 0 and f == 0: a(f"s_add_u32 {sr(sCc)}, {sr(sOo)}, {((f+NF)//4)*4096}")
            o_load(a, f + NF, fl)
    for j in range(4):
        a(f"ds_write_b128 {vr(vRed)}, {vr(D+4*j,4)} offset:{j*8192}")
    skip = a.newlabel("Lfs")
    a(f"""
    s_waitcnt lgkmcnt(0)
    s_barrier
    s_cmp_lt_u32 {sr(sWv)}, 4
    s_cbranch_scc0 {skip}
    s_lshl_b32 {sr(sA)}, {sr(sWv)}, 13
    v_add_u32 v7, {sr(sA)}, {vr(vLn16)}
    """)
    for w in range(8): a(f"ds_read_b128 {vr(OF+4*w,4)}, v7 offset:{w*1024}")
    for w in range(1, 8):
        a(f"s_waitcnt lgkmcnt({7-w})")
        a(f"v_pk_add_f32 {vr(OF,2)}, {vr(OF,2)}, {vr(OF+4*w,2)}\nv_pk_add_f32 {vr(OF+2,2)}, {vr(OF+2,2)}, {vr(OF+4*w+2,2)}")
    a(f"""
    v_cvt_pk_bf16_f32 {vr(RT)}, {vr(OF)}, {vr(OF+1)}
    v_cvt_pk_bf16_f32 {vr(RT+1)}, {vr(OF+2)}, {vr(OF+3)}
    s_lshl_b32 {sr(sA)}, {sr(seg)}, 15
    buffer_store_dwordx2 {vr(RT,2)}, {vr(vOut)}, {sr(sOUT,4)}, {sr(sA)} offen
    s_waitcnt vmcnt(0)
    """)
    a.label(skip)
    a("s_barrier")
```

```python
MB = 1 << 20
WS_SIZE = 256 * MB
KX_OFF = 0
VT_OFF = 16 * MB
QX_OFF = 32 * MB
KM_OFF = 48 * MB
VM_OFF = 56 * MB
P_OFF = 64 * MB
M_OFF = 65 * MB
DUMMY_OFF = 66 * MB
RING = 4
A_X, A_MEM0, A_WQ, A_WK, A_WV, A_WO, A_SEG, B_X, B_WQKV, B_WO, GATE_W, D_OUT, D_DBG, D_WS = [8 * i for i in range(14)]
QB_OFF = 68 * MB
KB_OFF = 70 * MB
VB_OFF = 72 * MB
G_OFF = 74 * MB
O_OFF = 76 * MB
O_SEG = 288 * 1024
```

```python
import math
from asmlib import *
from layout import *
from chain8 import f32bits, sWS

NT = 54
ACC = 128
FX = (64, 88); FW = (80, 104)
vXr = (40, 41, 42, 43); vWr_ = (44, 45); vXs = (46, 47); vWs = (48, 49); vLn16 = 50; vT = 51; vPc = (52, 53)
EP = 0
sXS = 8
sWD = 16
sXo, sWo, sRS2, sRS64, sLd, sIt, sTile, sNext, sOb, sSM, sSN, sSU, sTyp = range(20, 33)
sSc = 34
sWv, sWm, sWn = 36, 37, 38
sA, sB, sCc, sD = 40, 41, 42, 43
sPtr = 64
nOb, nSM, nSN, nSU, nTyp, nSc = 74, 75, 76, 77, 78, 79

def proj_setup(a):
    a(f"""
    s_load_dwordx2 s[8:9], s[0:1], {A_X}
    s_load_dwordx8 s[64:71], s[0:1], {A_WQ}
    s_load_dwordx2 s[72:73], s[0:1], {B_WQKV}
    s_mov_b32 s10, {2*MB}
    s_mov_b32 s11, 0x20000
    s_mov_b32 s19, 0x20000
    s_lshr_b32 {sr(sWm)}, {sr(sWv)}, 2
    s_and_b32 {sr(sWn)}, {sr(sWv)}, 3
    v_and_b32 v1, 63, v0
    v_lshlrev_b32 {vr(vLn16)}, 4, v1
    v_and_b32 v2, 31, v1
    v_lshrrev_b32 v3, 5, v1                 ; kh
    v_bfe_u32 v4, v1, 1, 3                  ; f
    v_xor_b32 v4, v4, v3
    s_lshl_b32 {sr(sA)}, {sr(sWm)}, 14
    v_lshlrev_b32 v5, 7, v2
    v_add_u32 v5, {sr(sA)}, v5
    """)
    for ks in range(4):
        a(f"v_xor_b32 v6, {2*ks}, v4\nv_lshl_add_u32 {vr(vXr[ks])}, v6, 4, v5")
    a(f"""
    v_bfe_u32 v4, v1, 2, 2                  ; rr
    v_lshl_add_u32 v5, v3, 3, v4
    v_lshlrev_b32 v5, 9, v5
    v_bfe_u32 v6, v1, 4, 1
    v_lshl_add_u32 v5, v6, 5, v5
    v_and_b32 v6, 3, v1
    v_lshl_add_u32 v5, v6, 3, v5
    v_add_u32 v5, 32768, v5
    s_lshl_b32 {sr(sA)}, {sr(sWn)}, 1
    v_xor_b32 v6, {sr(sA)}, v4
    v_lshl_add_u32 {vr(vWr_[0])}, v6, 6, v5
    v_xor_b32 {vr(vWr_[1])}, 64, {vr(vWr_[0])}
    v_lshrrev_b32 v4, 3, v1
    v_and_b32 v5, 7, v1
    v_lshrrev_b32 v6, 4, v1
    v_xor_b32 v5, v5, v6
    v_lshlrev_b32 v5, 4, v5
    v_lshl_add_u32 {vr(vXs[0])}, v4, 10, v5
    v_xor_b32 {vr(vXs[1])}, 64, {vr(vXs[0])}
    v_lshlrev_b32 v4, 2, v3
    v_xor_b32 v4, v4, v2
    v_lshlrev_b32 {vr(vPc[0])}, 4, v4
    v_mov_b32 {vr(vPc[1])}, v3
    s_waitcnt lgkmcnt(0)
    """)

def tile_params(a, t):
    cq = (128 ** -0.5) * math.log2(math.e); cb = 0.25 * math.log2(math.e)
    lb = a.newlabel("Lpb"); le = a.newlabel("Lpe"); lv = a.newlabel("Lpv"); lq = a.newlabel("Lpq"); lc = a.newlabel("Lpc")
    l2 = a.newlabel("Lp2"); l3 = a.newlabel("Lp3"); ld = a.newlabel("Lpd")
    a(f"""
    s_cmp_lt_u32 {sr(t)}, 256
    s_cbranch_scc0 {l2}
    s_lshr_b32 {sr(sA)}, {sr(t)}, 5          ; mt
    s_and_b32 {sr(sB)}, {sr(t)}, 31          ; nt
    s_branch {ld}
    {l2}:
    s_cmp_lt_u32 {sr(t)}, 304
    s_cbranch_scc0 {l3}
    s_sub_u32 {sr(sB)}, {sr(t)}, 256
    s_and_b32 {sr(sA)}, {sr(sB)}, 7
    s_lshr_b32 {sr(sB)}, {sr(sB)}, 3
    s_add_u32 {sr(sB)}, {sr(sB)}, 48
    s_branch {ld}
    {l3}:
    s_sub_u32 {sr(sB)}, {sr(t)}, 304
    s_lshr_b32 {sr(sA)}, {sr(sB)}, 4
    s_and_b32 {sr(sB)}, {sr(sB)}, 15
    s_add_u32 {sr(sB)}, {sr(sB)}, 32
    {ld}:
    s_lshl_b32 {sr(sXo)}, {sr(sA)}, 18
    s_lshl_b32 {sr(sCc)}, {sr(sWv)}, 15
    s_add_u32 {sr(sXo)}, {sr(sXo)}, {sr(sCc)}
    s_lshl_b32 {sr(sA)}, {sr(sA)}, 3
    s_lshl_b32 {sr(sCc)}, {sr(sWm)}, 2
    s_add_u32 {sr(sA)}, {sr(sA)}, {sr(sCc)}
    s_mov_b32 {sr(nSc)}, 1.0
    s_mov_b32 {sr(nTyp)}, 0
    s_mov_b32 {sr(nSU)}, 1024
    s_cmp_lt_u32 {sr(sB)}, 48
    s_cbranch_scc0 {lb}
    s_mov_b32 {sr(sRS2)}, {2*8192}
    s_mov_b32 s18, {4*MB}
    s_mov_b32 {sr(nSM)}, 262144
    s_mov_b32 {sr(nSN)}, 2048
    s_lshr_b32 {sr(sD)}, {sr(sB)}, 4
    s_and_b32 {sr(sB)}, {sr(sB)}, 15
    s_lshl_b32 {sr(nOb)}, {sr(sA)}, 18
    s_lshl_b32 {sr(sCc)}, {sr(sB)}, 14
    s_add_u32 {sr(nOb)}, {sr(nOb)}, {sr(sCc)}
    s_lshl_b32 {sr(sCc)}, {sr(sWn)}, 12
    s_add_u32 {sr(nOb)}, {sr(nOb)}, {sr(sCc)}
    s_lshl_b32 {sr(sCc)}, {sr(sD)}, 24
    s_add_u32 {sr(nOb)}, {sr(nOb)}, {sr(sCc)}
    s_cmp_eq_u32 {sr(sD)}, 1
    s_cbranch_scc1 {lv}
    s_cmp_eq_u32 {sr(sD)}, 2
    s_cbranch_scc1 {lq}
    s_mov_b32 s16, s66
    s_mov_b32 s17, s67
    s_branch {le}
    {lv}:
    s_mov_b32 s16, s68
    s_mov_b32 s17, s69
    s_mov_b32 {sr(nTyp)}, 1
    s_branch {le}
    {lq}:
    s_mov_b32 s16, s64
    s_mov_b32 s17, s65
    s_mov_b32 {sr(nSc)}, {hex(f32bits(cq))}
    s_branch {le}
    {lb}:
    s_mov_b32 s16, s72
    s_mov_b32 s17, s73
    s_mov_b32 s18, {512*3072}
    s_mov_b32 {sr(sRS2)}, {2*3072}
    s_sub_u32 {sr(sB)}, {sr(sB)}, 48
    s_mov_b32 {sr(nSN)}, 131072
    s_lshl_b32 {sr(nOb)}, {sr(sB)}, 20
    s_lshl_b32 {sr(sCc)}, {sr(sWn)}, 18
    s_add_u32 {sr(nOb)}, {sr(nOb)}, {sr(sCc)}
    s_add_u32 {sr(nOb)}, {sr(nOb)}, {QB_OFF}
    s_cmp_lt_u32 {sr(sB)}, 4
    s_cbranch_scc1 {lc}
    s_mov_b32 {sr(nTyp)}, 1
    s_mov_b32 {sr(nSM)}, 2048
    s_lshl_b32 {sr(sCc)}, {sr(sA)}, 11
    s_add_u32 {sr(nOb)}, {sr(nOb)}, {sr(sCc)}
    s_branch {le}
    {lc}:
    s_mov_b32 {sr(nSM)}, 1024
    s_mov_b32 {sr(nSU)}, 65536
    s_lshl_b32 {sr(sCc)}, {sr(sA)}, 10
    s_add_u32 {sr(nOb)}, {sr(nOb)}, {sr(sCc)}
    s_cmp_lt_u32 {sr(sB)}, 2
    s_cselect_b32 {sr(nSc)}, {hex(f32bits(cb))}, 1.0
    {le}:
    s_lshl_b32 {sr(sRS64)}, {sr(sRS2)}, 5
    s_lshl_b32 {sr(sWo)}, {sr(sB)}, 9
    s_lshl_b32 {sr(sCc)}, {sr(sRS2)}, 2
    s_mul_i32 {sr(sCc)}, {sr(sCc)}, {sr(sWv)}
    s_add_u32 {sr(sWo)}, {sr(sWo)}, {sr(sCc)}
    s_lshr_b32 {sr(sCc)}, {sr(sRS2)}, 1
    v_mad_u32_u24 {vr(vWs[0])}, {vr(vPc[1])}, {sr(sCc)}, {vr(vPc[0])}
    v_xor_b32 {vr(vWs[1])}, 128, {vr(vWs[0])}
    """)
    assert KB_OFF == QB_OFF + 2 * MB and VB_OFF == QB_OFF + 4 * MB and VT_OFF == 16 * MB and QX_OFF == 32 * MB

def dma_ops(a):
    ops = []
    for i in range(4):
        ops.append(lambda i=i: a(f"s_add_u32 m0, {sr(sLd)}, {i*1024}\ns_add_u32 {sr(sA)}, {sr(sXo)}, {i*8192}\n"
                                 f"buffer_load_dwordx4 {vr(vXs[i&1])}, {sr(sXS,4)}, {sr(sA)} offen lds"))
    for i in range(4):
        pre = f"s_mov_b32 {sr(sB)}, {sr(sWo)}" if i == 0 else f"s_add_u32 {sr(sB)}, {sr(sB)}, {sr(sRS2)}"
        post = f"\ns_add_u32 {sr(sXo)}, {sr(sXo)}, 128\ns_add_u32 {sr(sWo)}, {sr(sWo)}, {sr(sRS64)}\ns_xor_b32 {sr(sLd)}, {sr(sLd)}, 65536" if i == 3 else ""
        ops.append(lambda i=i, pre=pre, post=post: a(f"s_add_u32 m0, {sr(sLd)}, {32768 + i*1024}\n{pre}\n"
                                 f"buffer_load_dwordx4 {vr(vWs[i&1])}, {sr(sWD,4)}, {sr(sB)} offen lds" + post))
    return ops

def frag_reads(a, ks, b):
    ops = []
    for ni in range(2):
        for q in range(2):
            ops.append(lambda ni=ni, q=q: a(f"ds_read_b64_tr_b16 {vr(FW[b]+4*ni+2*q,2)}, {vr(vWr_[ni])} offset:{(16*ks+4*q)*512}"))
    for mi in range(4):
        ops.append(lambda mi=mi: a(f"ds_read_b128 {vr(FX[b]+4*mi,4)}, {vr(vXr[ks])} offset:{mi*4096}"))
    return ops

def take_params(a):
    a(f"""
    s_mov_b32 {sr(sOb)}, {sr(nOb)}
    s_mov_b32 {sr(sSM)}, {sr(nSM)}
    s_mov_b32 {sr(sSN)}, {sr(nSN)}
    s_mov_b32 {sr(sSU)}, {sr(nSU)}
    s_mov_b32 {sr(sTyp)}, {sr(nTyp)}
    s_mov_b32 {sr(sSc)}, {sr(nSc)}
    s_mov_b32 {sr(sSc+1)}, {sr(nSc)}
    """)

def proj_body(a, next_tile, ntiles, stflags="", after_tile=None):
    tile_params(a, sTile)
    a(f"s_lshl_b32 {sr(sLd)}, {sr(sWv)}, 12")
    for _ in range(2):
        for g in dma_ops(a): g()
    for r in range(ACC, ACC + 128, 2): a(f"v_mov_b64 {vr(r,2)}, 0")
    a("s_waitcnt vmcnt(8)\ns_barrier")
    for g in frag_reads(a, 0, 0): g()
    ttop = a.newlabel("Ltile"); lN = a.newlabel("LtypN"); lep = a.newlabel("Lepi")
    a.label(ttop)
    take_params(a)
    next_tile(a)
    a(f"s_mov_b32 {sr(sIt)}, 0\ns_cmp_eq_u32 {sr(sTyp)}, 0\ns_cbranch_scc0 {lN}")
    for typ in range(2):
        if typ == 1: a.label(lN)
        top = a.newlabel("Lst"); nos = a.newlabel("Lnos")
        a.label(top)
        for ks in range(4):
            b = ks & 1
            side = []
            if ks < 3:
                a("s_waitcnt lgkmcnt(0)")
                side = frag_reads(a, ks + 1, b ^ 1)
            else:
                a(f"s_cmp_eq_u32 {sr(sIt)}, 6\ns_cbranch_scc0 {nos}")
                a(f"s_cmp_lt_u32 {sr(sNext)}, {ntiles}\ns_cselect_b32 {sr(sTile)}, {sr(sNext)}, {sr(sTile)}")
                tile_params(a, sTile)
                a.label(nos)
                for r in vXr + vWr_: a(f"v_xor_b32 {vr(r)}, 65536, {vr(r)}")
                a("s_waitcnt vmcnt(0) lgkmcnt(0)\ns_barrier")
                fr = frag_reads(a, 0, b ^ 1); dm = dma_ops(a)
                side = [lambda f=f, d=d: (f(), d()) for f, d in zip(fr, dm)]
            for mi in range(4):
                for ni in range(2):
                    d = ACC + 32 * mi + 16 * ni
                    x, w = vr(FX[b] + 4 * mi, 4), vr(FW[b] + 4 * ni, 4)
                    A, B = (w, x) if typ == 0 else (x, w)
                    a(f"v_mfma_f32_32x32x16_bf16 {vr(d,16)}, {A}, {B}, {vr(d,16)}")
                    side.pop(0)()
        a(f"s_add_u32 {sr(sIt)}, {sr(sIt)}, 1\ns_cmp_lt_u32 {sr(sIt)}, 8\ns_cbranch_scc1 {top}")
        if typ == 0: a(f"s_branch {lep}")
    a.label(lep)
    for mi in range(4):
        for ni in range(2):
            d = ACC + 32 * mi + 16 * ni
            e = EP + 8 * ((mi * 2 + ni) & 1)
            for j in range(8):
                a(f"v_pk_mul_f32 {vr(d+2*j,2)}, {vr(d+2*j,2)}, {sr(sSc,2)}")
            for j in range(8):
                a(f"v_cvt_pk_bf16_f32 {vr(e+j)}, {vr(d+2*j)}, {vr(d+2*j+1)}")
            if ni == 0: a(f"s_mov_b32 {sr(sA)}, {sr(sOb)}")
            else: a(f"s_add_u32 {sr(sA)}, {sr(sOb)}, {sr(sSN)}\ns_add_u32 {sr(sOb)}, {sr(sOb)}, {sr(sSM)}")
            a(f"s_add_u32 {sr(sB)}, {sr(sA)}, {sr(sSU)}")
            a(f"buffer_store_dwordx4 {vr(e,4)}, {vr(vLn16)}, {sr(sWS,4)}, {sr(sA)} offen {stflags}")
            a(f"buffer_store_dwordx4 {vr(e+4,4)}, {vr(vLn16)}, {sr(sWS,4)}, {sr(sB)} offen {stflags}")
            for j in range(8): a(f"v_mov_b64 {vr(d+2*j,2)}, 0")
    if after_tile: after_tile(a)
    a.drain()
    a(f"s_cmp_lt_u32 {sr(sNext)}, {ntiles}\ns_cbranch_scc1 {ttop}")
    a("s_waitcnt vmcnt(0) lgkmcnt(0)\ns_barrier")

def gate_rows(a, first, stride):
    top = a.newlabel("Lg"); end = a.newlabel("Lge")
    a(f"""
    s_load_dwordx2 s[80:81], s[0:1], {GATE_W}
    s_waitcnt lgkmcnt(0)
    global_load_dwordx4 v[8:11], {vr(vLn16)}, s[80:81]
    {top}:
    s_cmp_lt_u32 {sr(first)}, 2048
    s_cbranch_scc0 {end}
    s_lshl_b32 {sr(sA)}, {sr(first)}, 10
    buffer_load_dwordx4 v[12:15], {vr(vLn16)}, {sr(sXS,4)}, {sr(sA)} offen
    s_waitcnt vmcnt(0)
    v_mov_b32 v16, 0
    v_dot2c_f32_bf16 v16, v8, v12
    v_dot2c_f32_bf16 v16, v9, v13
    v_dot2c_f32_bf16 v16, v10, v14
    v_dot2c_f32_bf16 v16, v11, v15
    s_nop 3
    v_add_f32_dpp v16, v16, v16 quad_perm:[1,0,3,2] row_mask:0xf bank_mask:0xf
    v_add_f32_dpp v16, v16, v16 quad_perm:[2,3,0,1] row_mask:0xf bank_mask:0xf
    v_add_f32_dpp v16, v16, v16 row_ror:4 row_mask:0xf bank_mask:0xf
    v_add_f32_dpp v16, v16, v16 row_ror:8 row_mask:0xf bank_mask:0xf
    v_mov_b32 v17, v16
    v_permlane16_swap_b32 v16, v17
    v_add_f32 v16, v16, v17
    v_mov_b32 v17, v16
    v_permlane32_swap_b32 v16, v17
    v_add_f32 v16, v16, v17
    v_mul_f32 v16, {hex(f32bits(-math.log2(math.e)))}, v16
    v_exp_f32 v16, v16
    v_add_f32 v16, 1.0, v16
    v_rcp_f32 v16, v16
    s_lshl_b32 {sr(sA)}, {sr(first)}, 2
    s_add_u32 {sr(sA)}, {sr(sA)}, {G_OFF}
    s_mov_b64 exec, 1
    buffer_store_dword v16, {vr(vLn16)}, {sr(sWS,4)}, {sr(sA)} offen sc1
    s_mov_b64 exec, -1
    s_add_u32 {sr(first)}, {sr(first)}, {stride}
    s_branch {top}
    {end}:
    """)
```

```python
import sys
from asmlib import *
from layout import *
import chain8 as C
import proj as P
import battn as BA
import aattn as AA
import final as F

KD = """
.section .rodata,"a"
.p2align 6
.amdhsa_kernel {name}
  .amdhsa_next_free_vgpr {vgpr}
  .amdhsa_next_free_sgpr 102
  .amdhsa_accum_offset {acc}
  .amdhsa_group_segment_fixed_size 0
  .amdhsa_kernarg_size 112
  .amdhsa_user_sgpr_count 2
  .amdhsa_user_sgpr_kernarg_segment_ptr 1
  .amdhsa_system_sgpr_workgroup_id_x 1
.end_amdhsa_kernel
.text
"""
def begin(a, name):
    a.raw(f".globl {name}\n.p2align 8\n.type {name},@function")
    a.label(name)
def ws_srd(a):
    a(f"""
    s_load_dwordx2 s[4:5], s[0:1], {D_WS}
    s_mov_b32 s6, {WS_SIZE}
    s_mov_b32 s7, 0x20000
    """)
def guard(a, n):
    l = a.newlabel("Lin")
    a(f"s_cmp_lt_u32 s2, {n}\ns_cbranch_scc1 {l}\ns_endpgm")
    a.label(l)

def k_null(a, G):
    begin(a, "null_kernel")
    a("s_endpgm")
    a.raw(KD.format(name="null_kernel", vgpr=256, acc=256))

TS = {"on": False}
def stamp(a, slot):
    if not TS["on"]: return
    a(f"""
    s_memrealtime s[96:97]
    s_waitcnt lgkmcnt(0)
    v_mov_b32 v30, s96
    s_lshl_b32 s97, s2, 6
    s_add_u32 s97, s97, {100*MB}
    s_add_u32 s97, s97, {slot}
    v_mov_b32 v31, 0
    buffer_store_dword v30, v31, s[4:7], s97 offen
    """)

def k_proj(a, G):
    begin(a, "proj_kernel")
    guard(a, G)
    ws_srd(a)
    a("s_waitcnt lgkmcnt(0)\ns_mov_b32 s98, 8")
    stamp(a, 0)
    a(f"v_lshrrev_b32 v1, 6, v0\nv_readfirstlane_b32 {sr(P.sWv)}, v1")
    P.proj_setup(a)
    a(f"s_lshl_b32 s82, s2, 3\ns_add_u32 s82, s82, {sr(P.sWv)}")
    P.gate_rows(a, 82, G * 8)
    a(f"s_mov_b32 {sr(P.sTile)}, s2")
    stamp(a, 4)
    def at(a):
        stamp(a, "s98"); a("s_add_u32 s98, s98, 4")
    P.proj_body(a, lambda a: a(f"s_add_u32 {sr(P.sNext)}, {sr(P.sTile)}, {G}"), 432, after_tile=at)
    stamp(a, 20)
    a("s_endpgm")
    a.raw(KD.format(name="proj_kernel", vgpr=256, acc=256))

def waveid(a, r):
    a(f"v_lshrrev_b32 v1, 6, v0\nv_readfirstlane_b32 {sr(r)}, v1")

def k_battn(a, G):
    begin(a, "battn_kernel"); guard(a, G); ws_srd(a); waveid(a, BA.sWv)
    BA.battn_setup(a)
    a("s_waitcnt lgkmcnt(0)")
    BA.battn_task(a, 2)
    a("s_endpgm")
    a.raw(KD.format(name="battn_kernel", vgpr=256, acc=256))

def k_aattn(a, G):
    begin(a, "aattn_kernel"); guard(a, G); ws_srd(a); waveid(a, 36)
    AA.aattn_setup(a)
    a("s_lshl_b32 s20, s2, 3\ns_add_u32 s20, s20, s36\ns_waitcnt lgkmcnt(0)")
    AA.aattn_loads_x(a, 20); AA.aattn_loads_m(a, 20); AA.aattn_compute(a, 20)
    a("s_endpgm")
    a.raw(KD.format(name="aattn_kernel", vgpr=256, acc=256))

def k_final(a, G):
    begin(a, "final_kernel"); guard(a, G); ws_srd(a); waveid(a, F.sWv)
    a("s_lshr_b32 s30, s2, 4\ns_and_b32 s31, s2, 15")
    F.final_setup(a, 30)
    a.label("Lfin_loop")
    F.final_segment(a, 31)
    a("s_add_u32 s31, s31, 16\ns_cmp_lt_u32 s31, 64\ns_cbranch_scc1 Lfin_loop\ns_endpgm")
    a.raw(KD.format(name="final_kernel", vgpr=256, acc=256))

def k_chain(a, G, opt):
    from chain8 import sW, sRole, sH, sS, sEnd, sSpin, sDBG, sTmp, vW16, L_K0
    C.DBG.clear(); C.DBG.update(opt)
    begin(a, "chain_kernel"); guard(a, G); ws_srd(a)
    a(f"""
    s_load_dwordx2 {sr(sDBG,2)}, s[0:1], {D_DBG}
    s_getreg_b32 s3, hwreg(HW_REG_XCC_ID)
    s_and_b32 s3, s3, 15
    v_lshrrev_b32 v1, 6, v0
    v_readfirstlane_b32 {sr(sW)}, v1
    s_waitcnt lgkmcnt(0)
    s_cmp_eq_u32 s3, 0
    s_cbranch_scc0 Lworker
    s_lshr_b32 {sr(sRole)}, {sr(sW)}, 2
    s_and_b32 {sr(sW)}, {sr(sW)}, 3
    """)
    def ticket(off, dst):
        l = a.newlabel("Ltk")
        a(f"""
        v_mov_b32 v2, {off}
        v_mov_b32 v3, 1
        v_mov_b32 v5, {160*1024 - 16}
        v_cmp_eq_u32 vcc, 0, v0
        s_and_saveexec_b64 s[68:69], vcc
        s_cbranch_execz {l}
        global_atomic_add v4, v2, v3, {sr(sDBG,2)} sc0
        s_waitcnt vmcnt(0)
        ds_write_b32 v5, v4
        s_waitcnt lgkmcnt(0)
        {l}:
        s_mov_b64 exec, s[68:69]
        s_barrier
        ds_read_b32 v4, v5
        s_waitcnt lgkmcnt(0)
        v_readfirstlane_b32 {sr(dst)}, v4
        s_barrier
        """)
    ticket(0, sH)
    a(f"""
    s_mov_b32 {sr(sS)}, 0
    s_mov_b32 {sr(sEnd)}, 63
    s_mov_b32 {sr(sSpin)}, 0
    """)
    C.setup_common(a); C.init_scalars(a)
    a(f"s_cmp_eq_u32 {sr(sRole)}, 0\ns_cbranch_scc0 LroleB")
    for role in "AB":
        if role == "B": a.label("LroleB")
        g = C.load_weights(a, role); next(g)
        C.init_rings(a, "", 0)
        a("s_waitcnt vmcnt(0)\ns_barrier")
        if role == "A":
            a(f"""
            v_mov_b32 v2, 4
            v_mov_b32 v3, 1
            v_cmp_eq_u32 vcc, 0, {vr(vW16)}
            s_and_saveexec_b64 s[68:69], vcc
            s_cbranch_execz Lnoarr
            global_atomic_add v2, v3, {sr(sDBG,2)}
            s_waitcnt vmcnt(0)
            Lnoarr:
            s_mov_b64 exec, s[68:69]
            """)
        next(g)
        if role == "A":
            C.setup_A(a); C.prep_A(a)
        else:
            C.setup_B(a); C.kv_load(a)
            a(f"""
            v_mov_b32 v2, 4
            Lwaitall:
            global_load_dword v3, v2, {sr(sDBG,2)} sc1
            s_add_u32 {sr(sSpin)}, {sr(sSpin)}, 1
            s_cmp_gt_u32 {sr(sSpin)}, {1<<22}
            s_cbranch_scc1 Ldone
            s_waitcnt vmcnt(0)
            v_readfirstlane_b32 {sr(sTmp)}, v3
            s_cmp_lt_u32 {sr(sTmp)}, 32
            s_cbranch_scc1 Lwaitall
            """)
            C.kv_write(a); C.prep_B(a)
        (C.loop_A if role == "A" else C.loop_B)(a, "", "", "Ldone", "Ldone", opt)
    a.label("Ldone")
    a("s_endpgm")
    a.label("Lworker")
    a(f"s_mov_b32 {sr(BA.sWv)}, {sr(sW)}")
    BA.battn_setup(a)
    a.label("Lwloop")
    ticket(8, 30)
    a("s_cmp_lt_u32 s30, 256\ns_cbranch_scc0 Ldone")
    BA.battn_task(a, 30)
    a("s_branch Lwloop")
    a.raw(KD.format(name="chain_kernel", vgpr=256, acc=256))

V1 = [("proj_kernel", 216, 131072), ("chain_kernel", 256, 163840), ("aattn_kernel", 256, 0), ("final_kernel", 256, 163840)]
def gen(kernels, opt=None):
    opt = opt or {}
    a = Asm()
    for name, grid, lds in kernels:
        a.raw(f"; @launch kernel={name} grid=({grid},1,1) block=(512,1,1) lds={lds}")
    a.raw('.amdgcn_target "amdgcn-amd-amdhsa--gfx950"\n.text')
    done = set()
    for name, grid, lds in kernels:
        if name in done: continue
        done.add(name)
        globals()["k_" + name[:-7]](a, grid) if name != "chain_kernel" else k_chain(a, grid, opt)
    return a.text()
if __name__ == "__main__":
    open("v1.s", "w").write(gen(V1))
```

```python
from asmlib import *
from layout import *
from chain8 import sWS
sWv = 36
sA, sB, sCc, sD = 40, 41, 42, 43
sHd, sTb, sIt = 20, 21, 22
sEx = 24
vLn16, vKr, vVr, vVs, vMx, vG = 50, 51, 52, 53, 54, 55
QF = 56
KF = (60, 64, 68, 72)
VF = (76, 80, 84, 88)
CN = 96
S = (112, 128, 144, 160)
PK = (176, 184)
OA = 192

def battn_setup(a):
    a(f"""
    v_and_b32 v1, 63, v0
    v_lshlrev_b32 {vr(vLn16)}, 4, v1
    v_and_b32 v2, 15, v1
    v_lshrrev_b32 v3, 5, v1
    v_lshlrev_b32 {vr(vVr)}, 4, v2
    v_lshl_add_u32 {vr(vVr)}, v3, 8, {vr(vVr)}
    v_add_u32 {vr(vVr)}, 65536, {vr(vVr)}
    v_lshrrev_b32 v3, 4, v1
    v_lshlrev_b32 {vr(vVs)}, 4, v2
    v_lshl_add_u32 {vr(vVs)}, v3, 9, {vr(vVs)}
    s_mov_b32 {sr(sEx)}, 0xffff
    s_mov_b32 {sr(sEx+1)}, 0xffff
    """)

def battn_task(a, task, ldflags="", stflags="", drain=False):
    mf = lambda d, A, B, C: a(f"v_mfma_f32_32x32x16_bf16 {vr(d,16)}, {vr(A,4)}, {vr(B,4)}, {C}")
    a(f"""
    s_lshr_b32 {sr(sHd)}, {sr(task)}, 3
    s_and_b32 {sr(sTb)}, {sr(task)}, 7
    s_lshl_b32 {sr(sTb)}, {sr(sTb)}, 3
    s_add_u32 {sr(sTb)}, {sr(sTb)}, {sr(sWv)}
    s_lshl_b32 {sr(sA)}, {sr(sHd)}, 16
    s_lshl_b32 {sr(sB)}, {sr(sTb)}, 10
    s_add_u32 {sr(sB)}, {sr(sB)}, {sr(sA)}
    s_add_u32 {sr(sB)}, {sr(sB)}, {QB_OFF}
    buffer_load_dwordx4 {vr(QF,4)}, {vr(vLn16)}, {sr(sWS,4)}, {sr(sB)} offen {ldflags}
    s_lshl_b32 {sr(sB)}, {sr(sTb)}, 7
    s_add_u32 {sr(sB)}, {sr(sB)}, {G_OFF}
    v_bfe_u32 v1, {vr(vLn16)}, 4, 5
    v_lshlrev_b32 v1, 2, v1
    buffer_load_dword {vr(vG)}, v1, {sr(sWS,4)}, {sr(sB)} offen {ldflags}
    s_lshl_b32 {sr(sD)}, {sr(sWv)}, 13
    s_add_u32 {sr(sA)}, {sr(sA)}, {sr(sD)}
    s_add_u32 {sr(sA)}, {sr(sA)}, {KB_OFF}
    """)
    for i in range(2):
        a(f"s_add_u32 m0, {sr(sD)}, {i*4096}")
        for j in range(4):
            a(f"buffer_load_dwordx4 {vr(vLn16)}, {sr(sWS,4)}, {sr(sA)} offen offset:{j*1024} {ldflags} lds")
        if i == 0: a(f"s_add_u32 {sr(sA)}, {sr(sA)}, 4096")
    a(f"""
    s_lshr_b32 {sr(sA)}, {sr(sHd)}, 1
    s_lshl_b32 {sr(sA)}, {sr(sA)}, 17
    s_and_b32 {sr(sB)}, {sr(sHd)}, 1
    s_lshl_b32 {sr(sB)}, {sr(sB)}, 8
    s_add_u32 {sr(sA)}, {sr(sA)}, {sr(sB)}
    s_lshl_b32 {sr(sB)}, {sr(sWv)}, 14
    s_add_u32 {sr(sA)}, {sr(sA)}, {sr(sB)}
    s_add_u32 {sr(sA)}, {sr(sA)}, {VB_OFF}
    """)
    for i in range(8):
        a(f"s_add_u32 m0, {sr(sD)}, {65536 + i*1024}")
        a(f"buffer_load_dwordx4 {vr(vVs)}, {sr(sWS,4)}, {sr(sA)} offen {ldflags} lds")
        if i < 7: a(f"s_add_u32 {sr(sA)}, {sr(sA)}, 2048")
    for f in VF:
        for r in range(4): a(f"v_mov_b32 {vr(f+r)}, 0x3f803f80")
    for r in range(0, 16, 2): a(f"v_mov_b64 {vr(OA+r,2)}, 0")
    a(f"v_mov_b32 {vr(vMx)}, 0xff800000\nv_mov_b32 {vr(vKr)}, {vr(vLn16)}")
    a("s_waitcnt vmcnt(8)\ns_barrier")
    rdk = lambda j, t: a(f"ds_read_b128 {vr(KF[j],4)}, {vr(vKr)} offset:{t*1024}")
    for j in range(4): rdk(j, j)
    a(f"s_mov_b32 {sr(sIt)}, 0")
    for r in range(0, 32, 2): a(f"v_mov_b64 {vr(S[2]+r,2)}, {vr(vMx)}" if False else f"v_mov_b32 {vr(S[2]+r)}, {vr(vMx)}\nv_mov_b32 {vr(S[2]+r+1)}, {vr(vMx)}")
    def mx(sb):
        for j in range(8): a(f"v_max3_f32 {vr(vMx)}, {vr(vMx)}, {vr(sb+2*j)}, {vr(sb+2*j+1)}")
    top = a.newlabel("Lb1")
    a.label(top)
    for j in range(4):
        a("s_waitcnt lgkmcnt(3)")
        mf(S[j], KF[j], QF, "0")
        rdk(j, 4 + j)
        mx(S[(j + 2) & 3])
    a(f"v_add_u32 {vr(vKr)}, 4096, {vr(vKr)}")
    a(f"s_add_u32 {sr(sIt)}, {sr(sIt)}, 1\ns_cmp_lt_u32 {sr(sIt)}, 16\ns_cbranch_scc1 {top}")
    mx(S[2]); mx(S[3])
    a(f"""
    v_mov_b32 v1, {vr(vMx)}
    v_mov_b32 {vr(vKr)}, {vr(vLn16)}
    s_waitcnt lgkmcnt(0)
    v_permlane32_swap_b32 {vr(vMx)}, v1
    v_max_f32 {vr(vMx)}, {vr(vMx)}, v1
    """)
    for r in range(16): a(f"v_sub_f32 {vr(CN+r)}, 0, {vr(vMx)}")
    a(f"v_mov_b32 v2, {vr(vVr)}")
    a("s_waitcnt vmcnt(0)\ns_barrier")
    def rdv(p, t):
        a(f"s_mov_b64 exec, {sr(sEx,2)}")
        for u in range(2): a(f"ds_read_b128 {vr(VF[2*p+u],4)}, v2 offset:{t*1024 + u*512}")
        a("s_mov_b64 exec, -1")
    for j in range(4): rdk(j, j)
    rdv(0, 0); rdv(1, 1)
    a("s_waitcnt lgkmcnt(6)")
    mf(S[0], KF[0], QF, vr(CN, 16)); mf(S[1], KF[1], QF, vr(CN, 16))
    rdk(0, 4); rdk(1, 5)
    a(f"s_mov_b32 {sr(sIt)}, 0")
    top = a.newlabel("Lb2")
    a.label(top)
    for j in range(4):
        p = j & 1; sb = S[j]
        a("s_waitcnt lgkmcnt(3)")
        mf(S[(j + 2) & 3], KF[(j + 2) & 3], QF, vr(CN, 16))
        rdk((j + 2) & 3, j + 6)
        for r in range(8): a(f"v_exp_f32 {vr(sb+r)}, {vr(sb+r)}")
        a(f"v_exp_f32 {vr(sb+8)}, {vr(sb+8)}")
        for r in range(4): a(f"v_cvt_pk_bf16_f32 {vr(PK[p]+r)}, {vr(sb+2*r)}, {vr(sb+2*r+1)}")
        for r in range(9, 11): a(f"v_exp_f32 {vr(sb+r)}, {vr(sb+r)}")
        mf(OA, VF[2 * p], PK[p], vr(OA, 16))
        for r in range(11, 16): a(f"v_exp_f32 {vr(sb+r)}, {vr(sb+r)}")
        for r in range(4, 8): a(f"v_cvt_pk_bf16_f32 {vr(PK[p]+r)}, {vr(sb+2*r)}, {vr(sb+2*r+1)}")
        mf(OA, VF[2 * p + 1], PK[p] + 4, vr(OA, 16))
        rdv(p, j + 2)
    a(f"v_add_u32 {vr(vKr)}, 4096, {vr(vKr)}\nv_add_u32 v2, 4096, v2")
    a(f"s_add_u32 {sr(sIt)}, {sr(sIt)}, 1\ns_cmp_lt_u32 {sr(sIt)}, 16\ns_cbranch_scc1 {top}")
    a(f"""
    v_sub_f32 {vr(vG)}, 1.0, {vr(vG)}
    s_mul_i32 {sr(sA)}, {sr(sTb)}, {O_SEG}
    s_lshl_b32 {sr(sB)}, {sr(sHd)}, 10
    s_add_u32 {sr(sA)}, {sr(sA)}, {sr(sB)}
    s_add_u32 {sr(sA)}, {sr(sA)}, {O_OFF + 256*1024}
    v_rcp_f32 v1, {vr(OA+8)}
    v_mul_f32 v1, v1, {vr(vG)}
    """)
    for r in range(8): a(f"v_mul_f32 {vr(OA+r)}, {vr(OA+r)}, v1")
    for r in range(4): a(f"v_cvt_pk_bf16_f32 {vr(4+r)}, {vr(OA+2*r)}, {vr(OA+2*r+1)}")
    a(f"buffer_store_dwordx4 v[4:7], {vr(vLn16)}, {sr(sWS,4)}, {sr(sA)} offen {stflags}")
    a(("s_waitcnt vmcnt(0) lgkmcnt(0)" if drain else "s_waitcnt lgkmcnt(0)") + "\ns_barrier")
```

```python
import math, struct
from asmlib import *
from layout import *

def f32bits(x): return struct.unpack("<I", struct.pack("<f", x))[0]
DBG = {}
L_M = 0
L_KV = 8192
L_SX = 24576
L_O = L_SX
L_SM = 28672
L_SELR = 30720
L_MISC = 31744
L_K1 = 32768
L_V1 = 65536
L_K0 = 131072
LDS_BYTES = 160 * 1024
vL16, vW16, vW2, vIDX, T0 = 56, 57, 58, 59, 60
WVB = 64
MS = 0; RG = 16; ST = 32; SELT = 48
vSmw, vSm, vOw, T1, vX1, vX2, vX3 = 52, 53, 54, 55, 61, 62, 63
XB = 0; AV = 16; KVN = 24; ZB = 40
vOr, vPst, vVx = 61, 62, 63
sWS = 4
sH, sW, sS, sRole = 12, 13, 14, 15
sM0, sM1 = 16, 17
sP = 18
sH1a, sPk, sMst, sE, sMr, sKx, sVt, sKm, sVm, sC1, sC2, sSpin = range(22, 34)
sC = 34
sExLo = 36; sExHi = 38
sTmp = 40; sTmp2 = 41; sTmp3 = 42
sDBG = 44
sEnd = 46
sPv = 47
sCp = 8
sFl = 9
sF = 43
sSt = 48

def opreg(n):
    return ("v", WVB + n * 8)
def wloc(m, i, t):
    if m == "q": return opreg(i * 2 + t)
    if m == "k": return opreg(16 + i) if t == 1 else None
    if m == "v": return opreg(16 + (i - 4) * 2 + t) if i >= 4 else None
    p, c = i
    return opreg(p * 4 + c * 2 + t)
def rstr(loc, n=8, off=0): return f"{loc[0]}[{loc[1]+off}:{loc[1]+off+n-1}]"
def smf(a, d, A, B): a(f"v_smfmac_f32_16x16x64_bf16 {vr(d,4)}, {vr(A,4)}, {B}, {vr(vIDX)}")
def k_addr(i, half): return (vW2, (i * 2 + half) * 4096) if i < 4 else (vW16, L_K1 + ((i - 4) * 2 + half) * 4096)
def v_addr(i, t, half): return (vW2, (i * 4 + t * 2 + half) * 4096)
def rd_k(a, i):
    for h in range(2):
        va, off = k_addr(i, h); a(f"ds_read_b128 {vr(ST + 8*(i&1) + 4*h, 4)}, {vr(va)} offset:{off}")
def vstage(i): return KVN if (i == 0 and DBG.get('kvstage', 1)) else ZB
def rd_v(a, i, t):
    for h in range(2):
        va, off = v_addr(i, t, h); a(f"ds_read_b128 {vr(vstage(i) + 8*t + 4*h, 4)}, {vr(va)} offset:{off}")

def onehot_pairs(a, dst, dv, ds, c_lo, c_hi):
    for r, d in enumerate(ds):
        a(f"""
        v_cmp_eq_u32 vcc, {d}, {vr(dv)}
        v_cndmask_b32 {vr(dst+r)}, 0, {vr(c_lo)}, vcc
        v_cmp_eq_u32 vcc, {d+1}, {vr(dv)}
        v_cndmask_b32 {vr(dst+r)}, {vr(dst+r)}, {vr(c_hi)}, vcc
        """)

def setup_common(a):
    a(f"""
    v_and_b32 v1, 63, v0
    v_lshlrev_b32 {vr(vL16)}, 4, v1
    s_lshl_b32 {sr(sTmp)}, {sr(sW)}, 10
    v_add_u32 {vr(vW16)}, {sr(sTmp)}, {vr(vL16)}
    s_lshr_b32 {sr(sTmp)}, {L_K0}, {sr(sRole)}
    v_add_u32 {vr(vW2)}, {sr(sTmp)}, {vr(vW16)}
    v_and_b32 v2, 8, v1
    v_cmp_eq_u32 vcc, 0, v2
    s_mov_b64 {sr(sExLo,2)}, vcc
    s_not_b64 {sr(sExHi,2)}, vcc
    v_mov_b32 v3, 0xeeee
    v_mov_b32 v4, 0x4444
    v_cndmask_b32 {vr(vIDX)}, v3, v4, vcc
    """)
    c = (128 ** -0.5) * math.log2(math.e)
    a(f"s_mov_b32 {sr(sC)}, {hex(f32bits(c))}\ns_mov_b32 {sr(sC+1)}, {hex(f32bits(c))}")

def setup_A(a):
    a(f"""
    v_lshrrev_b32 v1, 4, {vr(vL16)}          ; lane
    v_xor_b32 {vr(vX1)}, 1024, {vr(vW16)}
    v_xor_b32 {vr(vX2)}, 2048, {vr(vW16)}
    v_xor_b32 {vr(vX3)}, 3072, {vr(vW16)}
    v_lshrrev_b32 {vr(vSmw)}, 1, {vr(vW16)}
    v_or_b32 {vr(vSm)}, 32, v1
    v_lshlrev_b32 {vr(vSm)}, 3, {vr(vSm)}
    v_add_u32 {vr(vSm)}, {L_SM}, {vr(vSm)}
    v_lshrrev_b32 v2, 4, v1                  ; g
    v_and_b32 v3, 7, v1                      ; r
    v_and_b32 v4, 8, v1
    v_lshl_add_u32 {vr(vOw)}, v2, 7, v4
    v_lshl_add_u32 {vr(vOw)}, v3, 4, {vr(vOw)}
    s_lshl_b32 {sr(sTmp)}, {sr(sW)}, 9
    v_add_u32 {vr(vOw)}, {sr(sTmp)}, {vr(vOw)}
    v_and_b32 v4, 15, v1
    v_and_b32 v2, 1, v2
    v_lshlrev_b32 v2, 2, v2
    v_sub_u32 v2, v4, v2                     ; n - 4*(g&1)
    v_mov_b32 v5, 0x3f80
    v_mov_b32 v6, 0x3f800000
    """)
    onehot_pairs(a, SELT, 2, (0, 2, 8, 10), 5, 6)
    onehot_pairs(a, 8, 3, (0, 2, 4, 6), 5, 6)
    a(f"ds_write_b128 {vr(vL16)}, v[8:11] offset:{L_SELR}")
    mst_addr(a, T1, T0)

def setup_B(a):
    a(f"""
    v_lshrrev_b32 v1, 4, {vr(vL16)}          ; lane
    v_lshrrev_b32 v2, 4, v1                  ; g
    v_and_b32 v3, 7, v1
    v_and_b32 v4, 15, v1                     ; n
    v_lshlrev_b32 {vr(vOr)}, 7, v2
    v_lshl_add_u32 {vr(vOr)}, v3, 4, {vr(vOr)}
    v_lshrrev_b32 v5, 1, v2
    v_lshlrev_b32 {vr(vPst)}, 13, v5
    v_lshl_add_u32 {vr(vPst)}, v3, 4, {vr(vPst)}
    v_lshrrev_b32 v5, 3, v4
    v_lshl_add_u32 {vr(vPst)}, v5, 12, {vr(vPst)}
    v_and_b32 v5, 1, v2
    v_lshl_add_u32 {vr(vPst)}, v5, 3, {vr(vPst)}
    v_bfe_u32 v5, v1, 3, 1
    v_lshlrev_b32 {vr(vVx)}, 12, v5
    v_lshrrev_b32 v5, 5, v1
    v_lshl_add_u32 {vr(vVx)}, v5, 8, {vr(vVx)}
    v_bfe_u32 v5, v1, 4, 1
    v_lshl_add_u32 {vr(vVx)}, v5, 7, {vr(vVx)}
    v_lshl_add_u32 {vr(vVx)}, v3, 4, {vr(vVx)}
    s_lshl_b32 {sr(sTmp)}, {sr(sW)}, 10
    v_add_u32 {vr(vVx)}, {sr(sTmp)}, {vr(vVx)}
    """)

def mst_addr(a, d, t):
    a(f"""
    v_and_b32 {vr(d)}, 0x70, {vr(vL16)}
    v_bfe_u32 {vr(t)}, {vr(vL16)}, 9, 1
    v_lshl_add_u32 {vr(d)}, {vr(t)}, 2, {vr(d)}
    v_bfe_u32 {vr(t)}, {vr(vL16)}, 8, 1
    v_lshl_add_u32 {vr(d)}, {vr(t)}, 3, {vr(d)}
    """)

def init_rings(a, st, slot0):
    a(f"""
    v_mov_b32 v8, -1
    v_mov_b32 v9, -1
    v_mov_b32 v10, -1
    v_mov_b32 v11, -1
    s_lshl_b32 {sr(sTmp)}, {sr(sH)}, 12
    s_lshl_b32 {sr(sTmp2)}, {sr(sRole)}, 17
    s_add_u32 {sr(sTmp)}, {sr(sTmp)}, {sr(sTmp2)}
    s_add_u32 {sr(sTmp)}, {sr(sTmp)}, {P_OFF}
    """)
    a(f"buffer_store_dwordx4 v[8:11], {vr(vW16)}, {sr(sWS,4)}, {sr(sTmp)} offen {st}")
    assert RING == 4
    nz = a.newlabel("Lnz")
    a(f"""
    s_mov_b64 exec, 0xff
    s_lshl_b32 {sr(sTmp3)}, {sr(sRole)}, 5
    s_add_u32 {sr(sTmp3)}, {sr(sTmp3)}, {sr(sH)}
    s_cmp_eq_u32 {sr(sW)}, {slot0}
    s_cbranch_scc0 {nz}
    s_load_dwordx2 s[64:65], s[0:1], {A_MEM0}
    v_lshlrev_b32 v13, 6, {vr(vL16)}
    s_lshl_b32 {sr(sTmp)}, {sr(sTmp3)}, 4
    v_add_u32 v13, {sr(sTmp)}, v13
    s_waitcnt lgkmcnt(0)
    global_load_dwordx4 v[12:15], v13, s[64:65]
    s_waitcnt vmcnt(0)
    v_min_u32 v8, -2, v12
    v_min_u32 v9, -2, v13
    v_min_u32 v10, -2, v14
    v_min_u32 v11, -2, v15
    {nz}:
    s_lshl_b32 {sr(sTmp)}, {sr(sTmp3)}, 7
    s_lshl_b32 {sr(sTmp2)}, {sr(sW)}, 13
    s_add_u32 {sr(sTmp)}, {sr(sTmp)}, {sr(sTmp2)}
    s_add_u32 {sr(sTmp)}, {sr(sTmp)}, {M_OFF}
    buffer_store_dwordx4 v[8:11], {vr(vL16)}, {sr(sWS,4)}, {sr(sTmp)} offen {st}
    s_mov_b64 exec, -1
    """)

def load_weights(a, role):
    vG0, vG1, vGo0, vGo1, vTq, vTo = 48, 49, 50, 51, 52, 53
    ring0 = 0 if role == "A" else 65536
    a(f"""
    v_lshrrev_b32 v1, 4, {vr(vL16)}            ; lane
    v_lshrrev_b32 v2, 4, v1
    v_and_b32 v3, 15, v1
    v_and_b32 v4, 1, v2
    v_lshlrev_b32 v4, 2, v4
    v_xor_b32 v3, v3, v4
    v_lshlrev_b32 v3, 4, v3
    v_xor_b32 v4, 128, v3                      ; j odd
    v_lshl_add_u32 {vr(vG0)}, v2, 13, v3
    v_lshl_add_u32 {vr(vG1)}, v2, 13, v4
    v_lshl_add_u32 {vr(vGo0)}, v2, 10, v3
    v_lshl_add_u32 {vr(vGo1)}, v2, 10, v4
    v_bfe_u32 v2, v1, 2, 1                     ; rr&1
    v_bfe_u32 v3, v1, 3, 1                     ; rr>>1
    v_bfe_u32 v4, v1, 4, 1                     ; gB&1
    v_bfe_u32 v5, v1, 5, 1                     ; gB>>1
    v_and_b32 v6, 3, v1                        ; c
    v_lshl_add_u32 v7, v4, 1, v2               ; f
    v_xor_b32 v7, {sr(sW)}, v7
    v_lshlrev_b32 v7, 6, v7                    ; (w^f)*64
    v_lshl_add_u32 v8, v4, 2, v2
    v_lshl_add_u32 v9, v3, 3, v8
    v_lshl_add_u32 v9, v5, 4, v9
    v_lshl_add_u32 {vr(vTq)}, v9, 8, v7
    v_lshrrev_b32 v10, 1, v6
    v_lshl_add_u32 {vr(vTq)}, v10, 5, {vr(vTq)}
    v_and_b32 v10, 1, v6
    v_lshl_add_u32 {vr(vTq)}, v10, 3, {vr(vTq)}
    v_lshl_add_u32 v9, v5, 2, v2
    v_lshl_add_u32 v9, v4, 3, v9
    v_lshl_add_u32 v7, v5, 1, v2
    v_xor_b32 v7, {sr(sW)}, v7
    v_lshlrev_b32 v7, 6, v7
    v_lshl_add_u32 {vr(vTo)}, v9, 8, v7
    v_lshl_add_u32 {vr(vTo)}, v3, 5, {vr(vTo)}
    v_lshl_add_u32 {vr(vTo)}, v6, 3, {vr(vTo)}
    v_add_u32 {vr(vTq)}, {ring0}, {vr(vTq)}
    v_add_u32 {vr(vTo)}, {ring0}, {vr(vTo)}
    s_load_dwordx4 s[64:67], s[0:1], {A_WQ if role == "A" else A_WV}
    s_lshl_b32 s88, {sr(sH)}, 8
    s_lshl_b32 s90, {sr(sW)}, 17
    s_add_u32 s88, s88, s90                    ; h*256 + w*16 rows
    s_lshl_b32 s89, {sr(sH)}, 17
    s_lshl_b32 s90, {sr(sW)}, 14
    s_add_u32 s89, s89, s90
    s_lshl_b32 s92, {sr(sW)}, 12
    s_add_u32 s92, s92, {ring0}
    s_waitcnt lgkmcnt(0)
    """)
    for n in range(2):
        r = 72 + 4 * n
        a(f"s_mov_b32 {sr(r)}, {sr(64+2*n)}\ns_mov_b32 {sr(r+1)}, {sr(65+2*n)}\ns_mov_b32 {sr(r+2)}, {4*MB}\ns_mov_b32 {sr(r+3)}, 0x20000")
    if role == "A":
        ch = [("q", i) for i in range(8)] + [("k", i) for i in range(8)]; srd = {"q": 72, "k": 76}
    else:
        ch = [("o", (p, c)) for p in range(4) for c in range(2)] + [("v", i) for i in (4, 5, 6, 7, 0, 1, 2, 3)]; srd = {"v": 72, "o": 76}
    def issue(n):
        m, i = ch[n]
        if m == "o":
            a(f"s_add_u32 s91, s89, {i[0]*256 + i[1]*64*1024}"); step = 4 * 1024; vg = (vGo0, vGo1)
        else:
            a(f"s_add_u32 s91, s88, {i * 64 * 8192}"); step = 4 * 8192; vg = (vG0, vG1)
        for j in range(4):
            a(f"s_add_u32 m0, s92, {(n % 4) * 16384 + j * 1024}")
            a(f"buffer_load_dwordx4 {vr(vg[j&1])}, {sr(srd[m],4)}, s91 offen lds")
            if j < 3: a(f"s_add_u32 s91, s91, {step}")
    def tmp(m, i, t):
        if m == "k": return 32 if i < 4 else (i - 4) * 8
        return (i & 1) * 16 + t * 8
    def writeback(m, i):
        for t in ((0,) if m == "k" else (0, 1)):
            for h in range(2):
                va, off = k_addr(i, h) if m == "k" else v_addr(i, t, h)
                a(f"ds_write_b128 {vr(va)}, {vr(tmp(m,i,t)+4*h,4)} offset:{off}")
    yield_points = []
    for n in range(3): issue(n)
    yield
    for n in range(16):
        m, i = ch[n]
        a(f"s_waitcnt vmcnt({4*min(2, 15-n)}) lgkmcnt(0)\ns_barrier")
        if n + 3 < 16: issue(n + 3)
        if n > 0 and ch[n-1][0] == "v" and ch[n-1][1] < 4: writeback(*ch[n-1])
        base = (n % 4) * 16384
        for t in range(2):
            loc = wloc(m, i, t) or ("v", tmp(m, i, t))
            for aa in range(2):
                for b in range(2):
                    if m == "o": off = base + (32 * t + 16 * aa + 2 * b) * 256; va = vTo
                    else: off = base + (32 * aa + 2 * b) * 256 + t * 16; va = vTq
                    a(f"ds_read_b64_tr_b16 {rstr(loc, 2, 4*aa+2*b)}, {vr(va)} offset:{off}")
        if m == "k" and i < 4:
            a("s_waitcnt lgkmcnt(0)"); writeback(m, i)
    a("s_waitcnt lgkmcnt(0)\ns_barrier")
    if role == "A":
        for i in range(4, 8): writeback("k", i)
    else:
        writeback("v", 3)
    a("s_waitcnt lgkmcnt(0)")
    yield

def wrap_add(a, r, inc, bits, lo):
    field = ((1 << bits) - 1) << lo
    a(f"s_add_u32 {sr(sTmp)}, {sr(r)}, {inc}")
    a(f"s_and_b32 {sr(sTmp)}, {sr(sTmp)}, {hex(field)}")
    a(f"s_andn2_b32 {sr(r)}, {sr(r)}, {hex(field)}")
    a(f"s_or_b32 {sr(r)}, {sr(r)}, {sr(sTmp)}")

def init_scalars(a):
    a(f"""
    s_and_b32 {sr(sTmp)}, {sr(sS)}, {RING-1}
    s_lshl_b32 {sr(sM0)}, {sr(sTmp)}, 13
    s_add_u32 {sr(sM0)}, {sr(sM0)}, {M_OFF}
    s_add_u32 {sr(sM1)}, {sr(sM0)}, 4096
    s_lshl_b32 {sr(sTmp2)}, {sr(sH)}, 7
    s_and_b32 {sr(sTmp3)}, {sr(sW)}, 1
    s_lshl_b32 {sr(sMst)}, {sr(sTmp3)}, 12
    s_add_u32 {sr(sMst)}, {sr(sMst)}, {sr(sM0)}
    s_add_u32 {sr(sMst)}, {sr(sMst)}, {sr(sTmp2)}      ; M + slot + (w&1)*4096 + h*128
    s_mov_b32 {sr(sMr)}, {sr(sMst)}
    s_mov_b32 {sr(sTmp)}, {P_OFF}
    s_add_u32 {sr(sP)}, {sr(sTmp)}, {sr(sTmp2)}
    s_lshl_b32 {sr(sTmp2)}, {sr(sW)}, 14
    s_add_u32 {sr(sP)}, {sr(sP)}, {sr(sTmp2)}
    s_add_u32 {sr(sP+1)}, {sr(sP)}, 0x10000
    s_add_u32 {sr(sP+2)}, {sr(sP)}, 0x20000
    s_add_u32 {sr(sP+3)}, {sr(sP)}, 0x30000
    s_lshl_b32 {sr(sTmp2)}, {sr(sH)}, 12
    s_add_u32 {sr(sH1a)}, {sr(sTmp)}, {sr(sTmp2)}
    s_lshl_b32 {sr(sTmp3)}, {sr(sTmp3)}, 17
    s_add_u32 {sr(sH1a)}, {sr(sH1a)}, {sr(sTmp3)}      ; P + slot + (w&1)*128K + h*4096
    s_mov_b32 {sr(sE)}, 0
    s_mov_b32 {sr(sPk)}, {DUMMY_OFF}
    s_mov_b32 {sr(sPv)}, {DUMMY_OFF}
    s_lshl_b32 {sr(sTmp2)}, {sr(sW)}, 11
    s_lshl_b32 {sr(sTmp)}, {sr(sS)}, 5
    s_add_u32 {sr(sTmp)}, {sr(sTmp)}, {sr(sH)}
    s_lshl_b32 {sr(sKx)}, {sr(sTmp)}, 13
    s_add_u32 {sr(sKx)}, {sr(sKx)}, {sr(sTmp2)}
    s_lshr_b32 {sr(sVm)}, {sr(sKx)}, 1
    s_add_u32 {sr(sVt)}, {sr(sKx)}, {VT_OFF}
    s_add_u32 {sr(sKm)}, {sr(sVm)}, {KM_OFF}
    s_add_u32 {sr(sVm)}, {sr(sVm)}, {VM_OFF}
    """)
    assert KX_OFF == 0
    wrap_add(a, sMst, 8192, 2, 13)

def kv_load_list(a):
    adv = "" if DBG.get("kvsame") else f"\ns_add_u32 {sr(sKx)}, {sr(sKx)}, {32*8192}\ns_add_u32 {sr(sVt)}, {sr(sVt)}, {32*8192}"
    fl = DBG.get("kvflags", "")
    return [lambda: a(f"buffer_load_dwordx4 {vr(KVN,4)}, {vr(vL16)}, {sr(sWS,4)}, {sr(sKx)} offen {fl}"),
            lambda: a(f"buffer_load_dwordx4 {vr(KVN+4,4)}, {vr(vL16)}, {sr(sWS,4)}, {sr(sKx)} offen offset:1024 {fl}"),
            lambda: a(f"buffer_load_dwordx4 {vr(KVN+8,4)}, {vr(vL16)}, {sr(sWS,4)}, {sr(sVt)} offen {fl}"),
            lambda: a(f"buffer_load_dwordx4 {vr(KVN+12,4)}, {vr(vL16)}, {sr(sWS,4)}, {sr(sVt)} offen offset:1024 {fl}" + adv)]
def kv_load(a):
    for g in kv_load_list(a): g()
def kv_write(a):
    for j in range(4): a(f"ds_write_b128 {vr(vVx)}, {vr(KVN+4*j,4)} offset:{L_KV + (j>>1)*8192 + (j&1)*512}")

def prep_A(a):
    rd_k(a, 0); rd_k(a, 1)
    for r in range(RG, RG + 16, 2): a(f"v_mov_b64 {vr(r,2)}, 0")
def prep_B(a):
    rd_v(a, 0, 0); rd_v(a, 0, 1)
    if DBG.get('kvstage', 1): rd_v(a, 1, 0); rd_v(a, 1, 1)
    for r in range(AV, AV + 8, 2): a(f"v_mov_b64 {vr(r,2)}, 0")

def helpers(a):
    cvt = lambda d, s0, s1: a(f"v_cvt_pk_bf16_f32 {vr(d)}, {vr(s0)}, {vr(s1)}")
    mf = lambda d, A, B, C: a(f"v_mfma_f32_16x16x32_bf16 {vr(d,4)}, {vr(A,4)}, {vr(B,4)}, {C}")
    mf16 = lambda d, A, B: a(f"v_mfma_f32_16x16x16_bf16 {vr(d,4)}, {vr(A,2)}, {vr(B,2)}, {vr(d,4)}")
    pk = lambda op, d, x, y: a(f"v_pk_{op}_f32 {vr(d,2)}, {vr(x,2)}, {vr(y,2)}")
    return cvt, mf, mf16, pk

def pause(a, c):
    n = c // 4
    while n > 0:
        a(f"s_nop {min(n,16)-1}"); n -= 16

def spin(a, fail, spinmax, cnt=None):
    a(f"s_add_u32 {sr(sSpin)}, {sr(sSpin)}, 1")
    if cnt is not None and DBG.get("count"): a(f"s_add_u32 {sr(cnt)}, {sr(cnt)}, 1")
    a(f"s_cmp_gt_u32 {sr(sSpin)}, {spinmax}\ns_cbranch_scc1 {fail}")

def kv_wait(a, fail, spinmax):
    l = a.newlabel("Lkvs")
    a.label(l)
    a(f"s_sleep 4\nbuffer_load_dword {vr(T0)}, off, {sr(sWS,4)}, {sr(sF)} sc1")
    spin(a, fail, spinmax)
    a(f"""
    s_waitcnt vmcnt(0)
    v_and_b32 {vr(T0)}, 15, {vr(T0)}
    v_cmp_ne_u32 vcc, 2, {vr(T0)}
    s_cbranch_vccnz {l}
    """)

def loop_A(a, st, pub, fail, done, opt):
    cvt, mf, mf16, pk = helpers(a)
    spinmax = opt.get("spinmax", 1 << 22)
    CMP = "v_cmp_lt_u32" if opt.get("solo") else "v_cmp_eq_u32"
    acc = {("q", 0): RG, ("k", 0): RG + 4, ("q", 1): RG + 8, ("k", 1): RG + 12}
    def W(m, i, t):
        loc = wloc(m, i, t)
        smf(a, acc[(m, t)], MS + 4 * (i & 3), rstr(loc) if loc else vr(ST + 8 * (i & 1), 8))
    rd_m = lambda i: a(f"ds_read_b128 {vr(MS+4*(i&3),4)}, {vr(vL16)} offset:{L_M + 1024*i}")
    top = a.newlabel("LstepA")
    a.label(top)
    a("s_setprio 2\ns_waitcnt lgkmcnt(0)\ns_barrier")
    if opt.get("stamps"): a(f"s_memtime {sr(sSt,2)}")
    for i in range(4): rd_m(i)
    q = ["m0", "m1", "m2", "m3"]
    def need(*tags):
        idx = max([q.index(t) for t in tags if t in q] + [-1])
        if idx >= 0:
            a(f"s_waitcnt lgkmcnt({len(q)-1-idx})"); del q[:idx + 1]
    def RK(i): rd_k(a, i); q.extend([f"k{i}", f"k{i}"])
    def RM(i): rd_m(i); q.append(f"m{i}")
    def needk(i):
        t = f"k{i}"
        if t in q:
            idx = len(q) - 1 - q[::-1].index(t)
            a(f"s_waitcnt lgkmcnt({len(q)-1-idx})"); del q[:idx + 1]
    b2at = opt.get("b2at", 2)
    for i in range(6):
        need(f"m{i}")
        W("q", i, 0)
        needk(i)
        W("k", i, 0)
        RK(i + 2)
        W("q", i, 1)
        if i == 5:
            a(f"ds_read_b128 {vr(MS,4)}, {vr(vW16)} offset:{L_KV}"); q.append("kx0")
        W("k", i, 1)
        if i == b2at:
            a("s_barrier")
            for j in range(4, 5 + b2at): RM(j)
        elif i > b2at and i + 4 < 8: RM(i + 4)
    a(f"ds_read_b128 {vr(MS+4,4)}, {vr(vW16)} offset:{L_KV+4096}"); q.append("kx1")
    need("m6"); W("q", 6, 0); needk(6); W("k", 6, 0)
    need("m7"); W("q", 7, 0); needk(7); W("k", 7, 0)
    W("q", 6, 1); W("k", 6, 1)
    cvt(RG, RG, RG + 1)
    W("q", 7, 1)
    cvt(RG + 1, RG + 2, RG + 3)
    W("k", 7, 1)
    cvt(RG + 2, RG + 4, RG + 5); cvt(RG + 3, RG + 6, RG + 7)
    cvt(RG + 8, RG + 8, RG + 9); cvt(RG + 9, RG + 10, RG + 11)
    mf(RG + 4, RG, SELT, "0")
    cvt(RG + 10, RG + 12, RG + 13); cvt(RG + 11, RG + 14, RG + 15)
    mf(RG + 12, RG + 8, SELT, "0")
    need("kx0", "kx1")
    cvt(RG, RG + 4, RG + 5); cvt(RG + 1, RG + 6, RG + 7)
    cvt(RG + 2, RG + 12, RG + 13); cvt(RG + 3, RG + 14, RG + 15)
    X = RG; S0 = RG + 4; D1 = RG + 8; DM = RG + 12
    mf(D1, MS + 4, X, "0"); mf(S0, MS, X, "0"); mf(DM, X, X, "0")
    VX = MS
    a(f"""
    ds_read_b128 {vr(VX,4)}, {vr(vW16)} offset:{L_KV+8192}
    ds_read_b64 {vr(VX+6,2)}, {vr(vW16)} offset:{L_KV+12288}
    ds_read_b64 {vr(VX+4,2)}, {vr(vW16)} offset:{L_KV+12288+8}
    """)
    hi = lambda d, s: a(f"v_mov_b32_dpp {vr(d)}, {vr(s)} row_ror:8 row_mask:0xf bank_mask:0xc")
    for r in range(4): hi(S0 + r, D1 + r)
    a(f"ds_write_b128 {vr(vW16)}, {vr(S0,4)} offset:{L_SX}")
    hi(DM, DM + 2); hi(DM + 1, DM + 3)
    a(f"ds_write_b64 {vr(vSmw)}, {vr(DM,2)} offset:{L_SM}")
    a("s_waitcnt lgkmcnt(0)\ns_barrier")
    PMB = MS + 8
    for j, va in enumerate((vX1, vX2, vX3)):
        a(f"ds_read_b128 {vr(ST+4*j,4)}, {vr(va)} offset:{L_SX}")
        if j == 0:
            a(f"ds_read2_b64 {vr(PMB,4)}, {vr(vSm)} offset0:0 offset1:64")
        if j == 1:
            a(f"ds_read2_b64 {vr(PMB+4,4)}, {vr(vSm)} offset0:128 offset1:192")
    a(f"s_cmp_eq_u32 {sr(sS)}, {sr(sEnd)}\ns_cbranch_scc1 {done}_pubA")
    S4 = RG + 8
    a("s_waitcnt lgkmcnt(4)")
    pk("add", S0, S0, ST); pk("add", S0 + 2, S0 + 2, ST + 2)
    a("s_waitcnt lgkmcnt(2)")
    pk("add", S4, PMB, PMB + 2)
    pk("add", S0, S0, ST + 4); pk("add", S0 + 2, S0 + 2, ST + 6)
    a("s_waitcnt lgkmcnt(0)")
    pk("add", PMB + 4, PMB + 4, PMB + 6)
    pk("add", S0, S0, ST + 8); pk("add", S0 + 2, S0 + 2, ST + 10)
    pk("add", S4, S4, PMB + 4)
    MXv, MY, MZ = RG + 10, RG + 11, RG + 12
    B3B = f"s_barrier\nds_read_b128 {vr(ST+12,4)}, {vr(vW16)} offset:{L_KV}"
    a(f"""
    v_max3_f32 {vr(MXv)}, {vr(S0)}, {vr(S0+1)}, {vr(S0+2)}
    v_max3_f32 {vr(MXv)}, {vr(MXv)}, {vr(S0+3)}, {vr(S0+4)}
    v_max_f32 {vr(MXv)}, {vr(MXv)}, {vr(S0+5)}
    v_max_f32_dpp {vr(MY)}, {vr(MXv)}, {vr(MXv)} row_ror:8 row_mask:0xf bank_mask:0xf
    v_max_f32_dpp {vr(MXv)}, {vr(MXv)}, {vr(MXv)} row_ror:8 row_mask:0xf bank_mask:0xf
    v_permlane16_swap_b32 {vr(MXv)}, {vr(MY)}
    v_max_f32 {vr(MZ)}, {vr(MXv)}, {vr(MY)}
    v_max_f32 {vr(MXv)}, {vr(MXv)}, {vr(MY)}
    {B3B if opt.get('b3b', 0) == 0 else ''}
    v_permlane32_swap_b32 {vr(MXv)}, {vr(MZ)}
    v_max_f32 {vr(MXv)}, {vr(MXv)}, {vr(MZ)}
    v_mul_f32 {vr(MXv)}, {sr(sC)}, {vr(MXv)}
    """)
    VP = ST + 12
    for j in range(3):
        a(f"v_pk_fma_f32 {vr(S0+2*j,2)}, {vr(S0+2*j,2)}, {sr(sC,2)}, {vr(MXv,2)} op_sel_hi:[1,1,0] neg_lo:[0,0,1] neg_hi:[0,0,1]")
    PX, PM = RG + 12, RG + 10
    dppmov = lambda d, s: a(f"v_mov_b32_dpp {vr(d)}, {vr(s)} row_ror:8 row_mask:0xf bank_mask:0xf")
    ex = lambda j: a(f"v_exp_f32 {vr(S0+j)}, {vr(S0+j)}")
    ex(0); ex(1); ex(2); ex(3)
    if opt.get('b3b', 0) == 1: a(B3B)
    cvt(PX, S0, S0 + 1); cvt(PX + 1, S0 + 2, S0 + 3)
    ex(4)
    dppmov(PX + 2, PX); dppmov(PX + 3, PX + 1)
    ex(5)
    DA, DB = MS + 8, MS + 12
    SM_, SN, SO = ST, ST + 1, ST + 2
    a(f"v_add_f32 {vr(SM_)}, {vr(S0)}, {vr(S0+1)}")
    cvt(PM, S0 + 4, S0 + 5)
    mf(DA, VX, PX, "0")
    a(f"v_add_f32 {vr(SN)}, {vr(S0+4)}, {vr(S0+5)}")
    dppmov(PM + 1, PM)
    mf(DB, VX + 4, PX, "0")
    a(f"v_add_f32 {vr(SO)}, {vr(S0+2)}, {vr(S0+3)}")
    a(f"v_fmac_f32 {vr(SM_)}, 0.5, {vr(SN)}")
    a("s_waitcnt lgkmcnt(0)")
    mf16(DA, VP, PM)
    a(f"v_add_f32 {vr(SM_)}, {vr(SM_)}, {vr(SO)}")
    mf16(DB, VP + 2, PM)
    a(f"""
    v_add_f32_dpp {vr(SN)}, {vr(SM_)}, {vr(SM_)} row_ror:8 row_mask:0xf bank_mask:0xf
    v_add_f32_dpp {vr(SM_)}, {vr(SM_)}, {vr(SM_)} row_ror:8 row_mask:0xf bank_mask:0xf
    v_permlane16_swap_b32 {vr(SM_)}, {vr(SN)}
    v_add_f32 {vr(SO)}, {vr(SM_)}, {vr(SN)}
    v_add_f32 {vr(SM_)}, {vr(SM_)}, {vr(SN)}
    v_cndmask_b32 {vr(DA)}, {vr(DB)}, {vr(DA)}, {sr(sExLo,2)}
    v_cndmask_b32 {vr(DA+1)}, {vr(DB+1)}, {vr(DA+1)}, {sr(sExLo,2)}
    v_permlane32_swap_b32 {vr(SM_)}, {vr(SO)}
    v_add_f32 {vr(SM_)}, {vr(SM_)}, {vr(SO)}
    v_rcp_f32 {vr(SM_)}, {vr(SM_)}
    v_cndmask_b32 {vr(DA+2)}, {vr(DB+2)}, {vr(DA+2)}, {sr(sExLo,2)}
    v_cndmask_b32 {vr(DA+3)}, {vr(DB+3)}, {vr(DA+3)}, {sr(sExLo,2)}
    v_pk_mul_f32 {vr(DA,2)}, {vr(DA,2)}, {vr(SM_,2)} op_sel_hi:[1,0]
    v_pk_mul_f32 {vr(DA+2,2)}, {vr(DA+2,2)}, {vr(SM_,2)} op_sel_hi:[1,0]
    """)
    cvt(DA, DA, DA + 1); cvt(DA + 1, DA + 2, DA + 3)
    a(f"""
    ds_write_b64 {vr(vOw)}, {vr(DA,2)} offset:{L_O}
    s_add_u32 {sr(sS)}, {sr(sS)}, 1
    s_add_u32 {sr(sKm)}, {sr(sKm)}, {0 if DBG.get('pubsame') else 32*4096}
    s_waitcnt lgkmcnt(0)
    s_barrier
    s_setprio 1
    s_nop 15
    s_nop 15
    ds_write_b128 {vr(vW16)}, {vr(X,4)} offset:{L_KV + 4096}
    """)
    nored = a.newlabel("Lnored"); join = a.newlabel("LjoinA"); w1 = a.newlabel("Lw1")
    SELR, RA = RG + 8, RG + 4
    def h1loads():
        for i in range(4):
            a(f"buffer_load_dwordx4 {vr(MS+4*i,4)}, {vr(vL16)}, {sr(sWS,4)}, {sr(sH1a)} offen offset:{i*1024} sc1")
    def side():
        rd_k(a, 0); rd_k(a, 1)
        for r in range(RG + 8, RG + 16, 2): a(f"v_mov_b64 {vr(r,2)}, 0")
    def reduce(tag):
        p1 = a.newlabel("Lp1"); p1r = a.newlabel("Lp1r"); e1 = a.newlabel("Le1"); fin_ = a.newlabel("Lrf")
        a.label(p1)
        a(f"s_cmp_eq_u32 {sr(sE)}, 0\ns_cbranch_scc0 {e1}")
        for e in range(2):
            if e == 1: a.label(e1)
            for i in range(4):
                a(f"s_waitcnt vmcnt({3-i})")
                x, y = vr(MS + 4 * i), vr(MS + 4 * i + 2)
                if i == 0: a(f"{'v_or_b32' if e == 0 else 'v_and_b32'} {vr(T0)}, {x}, {y}")
                elif e == 0: a(f"v_or3_b32 {vr(T0)}, {vr(T0)}, {x}, {y}")
                else: a(f"v_bitop3_b32 {vr(T0)}, {vr(T0)}, {x}, {y} bitop3:0x80")
                mf(RA, MS + 4 * i, SELR, "0" if i == 0 else vr(RA, 4))
            if e == 0: a(f"s_branch {fin_}")
        a.label(fin_)
        a(f"""
        v_and_b32 {vr(T0)}, 1, {vr(T0)}
        {'v_cmp_gt_u32 vcc, 0,' if opt.get('solo') else f'v_cmp_ne_u32 vcc, {sr(sE)},'} {vr(T0)}
        s_cbranch_vccnz {p1r}
        v_permlane32_swap_b32 {vr(RA)}, {vr(RA+2)}
        v_permlane32_swap_b32 {vr(RA+1)}, {vr(RA+3)}
        v_pk_add_f32 {vr(RA,2)}, {vr(RA,2)}, {vr(RA+2,2)}
        v_cvt_pk_bf16_f32 {vr(RA)}, {vr(RA)}, {vr(RA+1)}
        v_min_u32 {vr(RA)}, -2, {vr(RA)}
        buffer_store_dword {vr(RA)}, {vr(T1)}, {sr(sWS,4)}, {sr(sMst)} offen {st}
        """)
        if tag == 0: a("s_barrier")
        a(f"""
        v_mov_b32 {vr(T0)}, -1
        buffer_store_dword {vr(T0)}, {vr(T1)}, {sr(sWS,4)}, {sr(sMr)} offen {st}
        """)
        return p1, p1r
    a(f"""
    ds_read_b128 {vr(SELR,4)}, {vr(vL16)} offset:{L_SELR}
    s_cmp_eq_u32 {sr(sW)}, 0
    s_cbranch_scc0 {w1}
    s_waitcnt lgkmcnt(0)
    s_barrier
    """)
    pause(a, opt.get("d0", 160))
    h1loads()
    r0 = reduce(0)
    a.label(join)
    prep_A(a)
    a(f"s_mov_b32 {sr(sMr)}, {sr(sMst)}\ns_xor_b32 {sr(sE)}, {sr(sE)}, 1")
    wrap_add(a, sMst, 8192, 2, 13)
    if opt.get("stamps"): opt["dump"](a)
    a.drain()
    a(f"s_branch {top}")
    a.label(w1)
    a(f"s_waitcnt lgkmcnt(0)\ns_barrier")
    dd = sorted([(opt.get("d1", 256), 1), (opt.get("d2", 1000), 2), (opt.get("d3", 1001), 3)])
    go = a.newlabel("Lgo"); prev = 0
    for d, w in dd:
        if d >= 1000:
            a(f"s_branch {nored}"); break
        pause(a, d - prev); prev = d
        if (d, w) != dd[-1]: a(f"s_cmp_eq_u32 {sr(sW)}, {w}\ns_cbranch_scc1 {go}")
    a(f"s_branch {go}")
    a.label(r0[1])
    if DBG.get("count"): a(f"s_add_u32 {sr(sC1)}, {sr(sC1)}, 1")
    a.label(go)
    h1loads()
    a("s_barrier")
    r1 = reduce(1)
    a(f"s_branch {join}")
    a.label(nored)
    a(f"s_barrier\ns_branch {join}")
    a.label(r1[1])
    h1loads()
    spin(a, fail, spinmax, sC1)
    a(f"s_branch {r1[0]}")
    a.label(f"{done}_pubA")
    a(f"""
    s_mov_b64 exec, {sr(sExHi,2)}
    buffer_store_dwordx4 {vr(X,4)}, {vr(vL16)}, {sr(sWS,4)}, {sr(sKm)} offen {pub}
    s_mov_b64 exec, -1
    s_branch {done}
    """)

def loop_B(a, st, pub, fail, done, opt):
    cvt, mf, mf16, pk = helpers(a)
    spinmax = opt.get("spinmax", 1 << 22)
    CMP = "v_cmp_lt_u32" if opt.get("solo") else "v_cmp_eq_u32"
    ld0 = f"buffer_load_dwordx4 {vr(XB,4)}, {vr(vW16)}, {sr(sWS,4)}, {sr(sM0)} offen sc1"
    ld1 = f"buffer_load_dwordx4 {vr(XB+4,4)}, {vr(vW16)}, {sr(sWS,4)}, {sr(sM1)} offen sc1"
    top = a.newlabel("LstepB")
    a(f"s_branch {top}")
    a.label(f"{top}_b7")
    a("s_setprio 3\ns_barrier")
    a.label(top)
    if opt.get("stamps"): a(f"s_memtime {sr(sSt,2)}")
    D = opt.get("depth", 3)
    pause(a, opt.get("dpoll", 64))
    for k in range(D - 1):
        a(ld0)
        pause(a, opt.get("gap", 80))
    p2 = a.newlabel("Lp2"); p2ok = a.newlabel("Lp2ok")
    U = opt.get("unroll", 4)
    a.label(p2)
    spin(a, fail, spinmax)
    for u in range(U):
        a(f"""
        {ld0}
        s_waitcnt vmcnt({D-1})
        v_max3_u32 {vr(T0)}, {vr(XB)}, {vr(XB+1)}, {vr(XB+2)}
        v_max_u32 {vr(T0)}, {vr(T0)}, {vr(XB+3)}
        {CMP} vcc, -1, {vr(T0)}
        """)
        if opt.get("specw", 1): a(f"ds_write_b128 {vr(vW16)}, {vr(XB,4)} offset:{L_M}")
        a(f"s_cbranch_vccz {p2ok}" if u < U - 1 else f"s_cbranch_vccnz {p2}")
        if u < U - 1: pause(a, opt.get("pgap", 0))
    a.label(p2ok)
    if not opt.get("specw", 1): a(f"ds_write_b128 {vr(vW16)}, {vr(XB,4)} offset:{L_M}")
    kvstage = DBG.get("kvstage", 1)
    fused = opt.get("fused", False)
    HK, HV = XB + 8, XB + 12
    q = []
    def RM(i, sl): a(f"ds_read_b128 {vr(XB+4*sl,4)}, {vr(vL16)} offset:{L_M + 1024*i}"); q.append(f"m{i}"); slots[i] = sl
    def RV(i, t): rd_v(a, i, t); q.extend([f"v{i}{t}"] * 2)
    def need(*tags):
        idx = max([len(q) - 1 - q[::-1].index(t) for t in tags if t in q] + [-1])
        if idx >= 0:
            a(f"s_waitcnt lgkmcnt({len(q)-1-idx})"); del q[:idx + 1]
    slots = {}
    b3at = opt.get("b3at", 14)
    cnt = [0]
    def VS(i, t):
        if cnt[0] == b3at: a("s_barrier")
        cnt[0] += 1
        need(f"m{i}", f"v{i}{t}")
        loc = wloc("v", i, t)
        smf(a, AV + 4 * t, XB + 4 * slots[i], rstr(loc) if loc else vr(vstage(i) + 8 * t, 8))
    ld1b = f"buffer_load_dwordx4 {vr(XB,4)}, {vr(vW16)}, {sr(sWS,4)}, {sr(sM1)} offen sc1"
    def pubs():
        a(f"""
        s_mov_b64 exec, {sr(sExHi,2)}
        buffer_store_dwordx4 {vr(HK,4)}, {vr(vL16)}, {sr(sWS,4)}, {sr(sPk)} offen {pub}
        s_mov_b64 exec, -1
        buffer_store_dwordx4 {vr(HV,4)}, {vr(vL16)}, {sr(sWS,4)}, {sr(sPv)} offen {pub}
        """)
        if fused:
            a(f"""
            s_sub_u32 {sr(sTmp)}, {sr(sS)}, 1
            s_max_i32 {sr(sTmp)}, {sr(sTmp)}, 0
            s_mov_b64 exec, 1
            v_mov_b32 {vr(T0)}, {sr(sTmp)}
            buffer_store_dword {vr(T0)}, off, {sr(sWS,4)}, {sr(sCp)} sc1
            s_mov_b64 exec, -1
            """)
    a(f"""
    {ld1}
    s_waitcnt lgkmcnt(0)
    s_barrier
    {ld1b}
    """)
    pubs()
    later = 3 if fused else 2
    RM(0, 2); RM(1, 3)
    p3 = a.newlabel("Lp3"); p3r = a.newlabel("Lp3r")
    a(f"""
    s_waitcnt vmcnt({later+1})
    ds_write_b128 {vr(vW16)}, {vr(XB+4,4)} offset:{L_M+4096}
    v_max3_u32 {vr(T0)}, {vr(XB+4)}, {vr(XB+5)}, {vr(XB+6)}
    v_max_u32 {vr(T0)}, {vr(T0)}, {vr(XB+7)}
    {CMP} vcc, -1, {vr(T0)}
    s_cbranch_vccnz {p3r}
    """)
    a.label(p3)
    kvl = kv_load_list(a)
    if not kvstage:
        for _ in range(opt.get("kvpre", 2)): kvl.pop(0)()
    a("s_waitcnt lgkmcnt(0)\ns_barrier")
    q.clear()
    if kvstage: VS(0, 0); VS(0, 1)
    a("s_setprio 0")
    for g in kvl: g()
    nf = 0
    if fused:
        nf = 2
        a(f"""
        s_add_u32 {sr(sTmp)}, {sr(sS)}, 2
        s_min_u32 {sr(sTmp)}, {sr(sTmp)}, 63
        s_lshr_b32 {sr(sTmp)}, {sr(sTmp)}, 3
        s_lshl_b32 {sr(sTmp)}, {sr(sTmp)}, 11
        s_add_u32 {sr(sF)}, {sr(sTmp)}, {sr(sFl)}
        buffer_load_dword {vr(T0)}, off, {sr(sWS,4)}, {sr(sF)} sc1
        """)
    q.clear()
    if kvstage:
        RM(2, 2); RM(5, 1)
        a(f"s_waitcnt vmcnt({6+nf})")
        RM(4, 0)
        VS(1, 0); RV(2, 0); VS(1, 1); RV(2, 1); RM(3, 3)
        VS(4, 0); VS(4, 1); RM(6, 0)
        VS(5, 0); VS(5, 1); RM(7, 1)
        VS(2, 0); RV(3, 0); VS(2, 1); RV(3, 1)
        VS(6, 0); VS(6, 1); VS(7, 0); VS(7, 1); VS(3, 0); VS(3, 1)
    else:
        RM(5, 1)
        a(f"s_waitcnt vmcnt({6+nf})")
        RM(4, 0)
        VS(0, 0); RV(1, 0); VS(0, 1); RV(1, 1); RM(2, 2)
        VS(4, 0); VS(4, 1); RM(6, 0)
        VS(1, 0); RV(2, 0); VS(1, 1); RV(2, 1); RM(3, 3)
        VS(5, 0); VS(5, 1); RM(7, 1)
        VS(2, 0); RV(3, 0); VS(2, 1); RV(3, 1)
        VS(6, 0); VS(6, 1); VS(7, 0); VS(7, 1); VS(3, 0); VS(3, 1)
    if b3at >= 16: a("s_barrier")
    cvt(AV, AV, AV + 1); cvt(AV + 1, AV + 2, AV + 3)
    cvt(AV + 2, AV + 6, AV + 7); cvt(AV + 3, AV + 4, AV + 5)
    adv = 0 if DBG.get('pubsame') else 32 * 4096
    a(f"""
    ds_write_b128 {vr(vW16)}, {vr(AV,4)} offset:{L_KV}
    s_mov_b32 {sr(sPk)}, {sr(sKm)}
    s_mov_b32 {sr(sPv)}, {sr(sVm)}
    s_add_u32 {sr(sVm)}, {sr(sVm)}, {adv}
    s_add_u32 {sr(sKm)}, {sr(sKm)}, {adv}
    s_cmp_eq_u32 {sr(sS)}, {sr(sEnd)}
    s_cbranch_scc1 {done}_pubB
    s_waitcnt lgkmcnt(0)
    s_barrier
    """)
    for r in range(0, 16, 2): a(f"v_mov_b64 {vr(ZB+r,2)}, 0")
    a(f"""
    s_add_u32 {sr(sS)}, {sr(sS)}, 1
    s_setprio 3
    s_barrier
    """)
    for w in range(4): a(f"ds_read_b128 {vr(XB+4*w,4)}, {vr(vOr)} offset:{L_O + w*512}")
    WO = lambda p, k: smf(a, ZB + 4 * p, XB + 4 * k, rstr(wloc("o", (p, k >> 1), k & 1)))
    def fin(p):
        d = ZB + 4 * p
        return [lambda: cvt(d, d, d + 1), lambda: cvt(d + 1, d + 2, d + 3),
                lambda: a(f"v_and_or_b32 {vr(d)}, {vr(d)}, -2, {sr(sE)}\nbuffer_store_dwordx2 {vr(d,2)}, {vr(vPst)}, {sr(sWS,4)}, {sr(sP+p)} offen {st}")]
    if opt.get("woseq", 1) == 0:
        seq = ["00", "10", "01", "11", "02", "20", "03", "12", "21", "13", "30", "22", "31", "23", "32", "33"]
        after = {8: [(0, 0)], 9: [(0, 1)], 10: [(0, 2)], 11: [(1, 0)], 12: [(1, 1)], 13: [(1, 2)]}
    else:
        seq = ["00", "10", "01", "11", "02", "12", "03", "13", "20", "30", "21", "31", "22", "23", "32", "33"]
        after = {8: [(0, 0), (0, 1)], 9: [(0, 2), (1, 0), (1, 1), (1, 2)]}
    seen = -1
    for n, pk_ in enumerate(seq):
        p, k = int(pk_[0]), int(pk_[1])
        if k > seen: a(f"s_waitcnt lgkmcnt({3-k})"); seen = k
        WO(p, k)
        for (pp, jj) in after.get(n, []): fin(pp)[jj]()
    for g in fin(2) + fin(3): g()
    a("s_barrier")
    a("s_setprio 0")
    def hold_v():
        a(f"v_mov_b64 {vr(HV,2)}, {vr(AV,2)}\nv_mov_b32 {vr(HV+2)}, {vr(AV+3)}\nv_mov_b32 {vr(HV+3)}, {vr(AV+2)}")
    a(f"ds_read_b128 {vr(HK,4)}, {vr(vW16)} offset:{L_KV + 4096}")
    hold_v()
    a("s_waitcnt vmcnt(4)")
    kv_write(a)
    prep_B(a)
    kvw = a.newlabel("Lkvw"); kvok = a.newlabel("Lkvok")
    if fused:
        a(f"""
        v_and_b32 {vr(T0)}, 15, {vr(T0)}
        v_cmp_ne_u32 vcc, 2, {vr(T0)}
        s_cbranch_vccnz {kvw}
        """)
        a.label(kvok)
    a(f"s_xor_b32 {sr(sE)}, {sr(sE)}, 1")
    wrap_add(a, sM0, 8192, 2, 13)
    a(f"s_add_u32 {sr(sM1)}, {sr(sM0)}, 4096")
    if opt.get("stamps"): opt["dump"](a)
    if opt.get("dumpB"): opt["dumpB"](a)
    a.drain()
    a(f"s_branch {top}_b7")
    a.label(p3r)
    p3s = a.newlabel("Lp3s")
    a(f"s_waitcnt vmcnt({later})")
    a.label(p3s)
    a(f"""
    ds_write_b128 {vr(vW16)}, {vr(XB,4)} offset:{L_M+4096}
    v_max3_u32 {vr(T0)}, {vr(XB)}, {vr(XB+1)}, {vr(XB+2)}
    v_max_u32 {vr(T0)}, {vr(T0)}, {vr(XB+3)}
    {CMP} vcc, -1, {vr(T0)}
    s_cbranch_vccz {p3}
    {ld1b}
    """)
    spin(a, fail, spinmax, sC2)
    a(f"s_waitcnt vmcnt(0)\ns_branch {p3s}")
    if fused:
        a.label(kvw)
        kv_wait(a, fail, spinmax)
        a(f"s_branch {kvok}")
    a.label(f"{done}_pubB")
    hold_v()
    a(f"buffer_store_dwordx4 {vr(HV,4)}, {vr(vL16)}, {sr(sWS,4)}, {sr(sPv)} offen {pub}")
    a(f"s_branch {done}")
```

```python
MB = 1 << 20
WS_SIZE = 256 * MB
KX_OFF = 0
VT_OFF = 16 * MB
QX_OFF = 32 * MB
KM_OFF = 48 * MB
VM_OFF = 56 * MB
P_OFF = 64 * MB
M_OFF = 65 * MB
DUMMY_OFF = 66 * MB
RING = 4
A_X, A_MEM0, A_WQ, A_WK, A_WV, A_WO, A_SEG, B_X, B_WQKV, B_WO, GATE_W, D_OUT, D_DBG, D_WS = [8 * i for i in range(14)]
QB_OFF = 68 * MB
KB_OFF = 70 * MB
VB_OFF = 72 * MB
G_OFF = 74 * MB
O_OFF = 76 * MB
O_SEG = 288 * 1024
FL_OFF = 96 * MB
FL_KVQ = FL_OFF
FL_OC = FL_OFF + 16384
FL_BD = FL_OFF + 24576
FL_BQ = FL_OFF + 25600
FL_CP = FL_OFF + 32768
DBG_READY, DBG_INIT, DBG_SLOT = 4, 12, 128
```

```python
import math
from asmlib import *
from layout import *
from chain8 import f32bits, sWS

NT = 54
ACC = 128
FX = (64, 88); FW = (80, 104)
vXr = (40, 41, 42, 43); vWr_ = (44, 45); vXs = (46, 47); vWs = (48, 49); vLn16 = 50; vT = 51; vPc = (52, 53)
EP = 0
sXS = 8
sWD = 16
sXo, sWo, sRS2, sRS64, sLd, sIt, sTile, sNext, sOb, sSM, sSN, sSU, sTyp = range(20, 33)
sSc = 34
sWv, sWm, sWn = 36, 37, 38
sA, sB, sCc, sD = 40, 41, 42, 43
sPtr = 64
nOb, nSM, nSN, nSU, nTyp, nSc, nSig, nInc = 74, 75, 76, 77, 78, 79, 80, 81
sSig, sInc, sPSig, sPInc = 44, 45, 46, 47

def proj_setup(a):
    a(f"""
    s_load_dwordx2 s[8:9], s[0:1], {A_X}
    s_load_dwordx8 s[64:71], s[0:1], {A_WQ}
    s_load_dwordx2 s[72:73], s[0:1], {B_WQKV}
    s_mov_b32 s10, {2*MB}
    s_mov_b32 s11, 0x20000
    s_mov_b32 s19, 0x20000
    s_lshr_b32 {sr(sWm)}, {sr(sWv)}, 2
    s_and_b32 {sr(sWn)}, {sr(sWv)}, 3
    v_and_b32 v1, 63, v0
    v_lshlrev_b32 {vr(vLn16)}, 4, v1
    v_and_b32 v2, 31, v1
    v_lshrrev_b32 v3, 5, v1                 ; kh
    v_bfe_u32 v4, v1, 1, 3                  ; f
    v_xor_b32 v4, v4, v3
    s_lshl_b32 {sr(sA)}, {sr(sWm)}, 14
    v_lshlrev_b32 v5, 7, v2
    v_add_u32 v5, {sr(sA)}, v5
    """)
    for ks in range(4):
        a(f"v_xor_b32 v6, {2*ks}, v4\nv_lshl_add_u32 {vr(vXr[ks])}, v6, 4, v5")
    a(f"""
    v_bfe_u32 v4, v1, 2, 2                  ; rr
    v_lshl_add_u32 v5, v3, 3, v4
    v_lshlrev_b32 v5, 9, v5
    v_bfe_u32 v6, v1, 4, 1
    v_lshl_add_u32 v5, v6, 5, v5
    v_and_b32 v6, 3, v1
    v_lshl_add_u32 v5, v6, 3, v5
    v_add_u32 v5, 32768, v5
    s_lshl_b32 {sr(sA)}, {sr(sWn)}, 1
    v_xor_b32 v6, {sr(sA)}, v4
    v_lshl_add_u32 {vr(vWr_[0])}, v6, 6, v5
    v_xor_b32 {vr(vWr_[1])}, 64, {vr(vWr_[0])}
    v_lshrrev_b32 v4, 3, v1
    v_and_b32 v5, 7, v1
    v_lshrrev_b32 v6, 4, v1
    v_xor_b32 v5, v5, v6
    v_lshlrev_b32 v5, 4, v5
    v_lshl_add_u32 {vr(vXs[0])}, v4, 10, v5
    v_xor_b32 {vr(vXs[1])}, 64, {vr(vXs[0])}
    v_lshlrev_b32 v4, 2, v3
    v_xor_b32 v4, v4, v2
    v_lshlrev_b32 {vr(vPc[0])}, 4, v4
    v_mov_b32 {vr(vPc[1])}, v3
    s_waitcnt lgkmcnt(0)
    """)

def tile_params(a, t):
    cq = (128 ** -0.5) * math.log2(math.e); cb = 0.25 * math.log2(math.e)
    lb = a.newlabel("Lpb"); le = a.newlabel("Lpe"); lv = a.newlabel("Lpv"); lq = a.newlabel("Lpq"); lc = a.newlabel("Lpc")
    l2 = a.newlabel("Lp2"); l3 = a.newlabel("Lp3"); ld = a.newlabel("Lpd")
    a(f"""
    s_cmp_lt_u32 {sr(t)}, 224
    s_cbranch_scc0 {l2}
    s_mul_i32 {sr(sB)}, {sr(t)}, 9363        ; nt = t / 7
    s_lshr_b32 {sr(sB)}, {sr(sB)}, 16
    s_mul_i32 {sr(sA)}, {sr(sB)}, 7
    s_sub_u32 {sr(sA)}, {sr(t)}, {sr(sA)}    ; mt
    s_branch {ld}
    {l2}:
    s_cmp_lt_u32 {sr(t)}, 400
    s_cbranch_scc0 {l3}
    s_sub_u32 {sr(sB)}, 399, {sr(t)}
    s_and_b32 {sr(sA)}, {sr(sB)}, 7
    s_lshr_b32 {sr(sB)}, {sr(sB)}, 3
    s_add_u32 {sr(sB)}, {sr(sB)}, 32
    s_branch {ld}
    {l3}:
    s_sub_u32 {sr(sB)}, {sr(t)}, 400
    s_mov_b32 {sr(sA)}, 7
    {ld}:
    s_lshl_b32 {sr(sXo)}, {sr(sA)}, 18
    s_lshl_b32 {sr(sCc)}, {sr(sWv)}, 15
    s_add_u32 {sr(sXo)}, {sr(sXo)}, {sr(sCc)}
    s_lshl_b32 {sr(nSig)}, {sr(sA)}, 11
    s_mov_b32 {sr(nInc)}, 1
    s_lshl_b32 {sr(sA)}, {sr(sA)}, 3
    s_lshl_b32 {sr(sCc)}, {sr(sWm)}, 2
    s_add_u32 {sr(sA)}, {sr(sA)}, {sr(sCc)}
    s_mov_b32 {sr(nSc)}, 1.0
    s_mov_b32 {sr(nTyp)}, 0
    s_mov_b32 {sr(nSU)}, 1024
    s_cmp_lt_u32 {sr(sB)}, 48
    s_cbranch_scc0 {lb}
    s_mov_b32 {sr(sRS2)}, {2*8192}
    s_mov_b32 s18, {4*MB}
    s_mov_b32 {sr(nSM)}, 262144
    s_mov_b32 {sr(nSN)}, 2048
    s_lshr_b32 {sr(sD)}, {sr(sB)}, 4
    s_and_b32 {sr(sB)}, {sr(sB)}, 15
    s_lshl_b32 {sr(sCc)}, {sr(sB)}, 7
    s_add_u32 {sr(nSig)}, {sr(nSig)}, {sr(sCc)}
    s_add_u32 {sr(nSig)}, {sr(nSig)}, {FL_KVQ}
    s_lshl_b32 {sr(nOb)}, {sr(sA)}, 18
    s_lshl_b32 {sr(sCc)}, {sr(sB)}, 14
    s_add_u32 {sr(nOb)}, {sr(nOb)}, {sr(sCc)}
    s_lshl_b32 {sr(sCc)}, {sr(sWn)}, 12
    s_add_u32 {sr(nOb)}, {sr(nOb)}, {sr(sCc)}
    s_lshl_b32 {sr(sCc)}, {sr(sD)}, 24
    s_add_u32 {sr(nOb)}, {sr(nOb)}, {sr(sCc)}
    s_cmp_eq_u32 {sr(sD)}, 1
    s_cbranch_scc1 {lv}
    s_cmp_eq_u32 {sr(sD)}, 2
    s_cbranch_scc1 {lq}
    s_mov_b32 s16, s66
    s_mov_b32 s17, s67
    s_branch {le}
    {lv}:
    s_mov_b32 s16, s68
    s_mov_b32 s17, s69
    s_mov_b32 {sr(nTyp)}, 1
    s_branch {le}
    {lq}:
    s_mov_b32 s16, s64
    s_mov_b32 s17, s65
    s_mov_b32 {sr(nSc)}, {hex(f32bits(cq))}
    s_mov_b32 {sr(nInc)}, 16
    s_branch {le}
    {lb}:
    s_mov_b32 s16, s72
    s_mov_b32 s17, s73
    s_mov_b32 s18, {512*3072}
    s_mov_b32 {sr(nSig)}, {FL_BQ}
    s_mov_b32 {sr(sRS2)}, {2*3072}
    s_sub_u32 {sr(sB)}, {sr(sB)}, 48
    s_mov_b32 {sr(nSN)}, 131072
    s_lshl_b32 {sr(nOb)}, {sr(sB)}, 20
    s_lshl_b32 {sr(sCc)}, {sr(sWn)}, 18
    s_add_u32 {sr(nOb)}, {sr(nOb)}, {sr(sCc)}
    s_add_u32 {sr(nOb)}, {sr(nOb)}, {QB_OFF}
    s_cmp_lt_u32 {sr(sB)}, 4
    s_cbranch_scc1 {lc}
    s_mov_b32 {sr(nTyp)}, 1
    s_mov_b32 {sr(nSM)}, 2048
    s_lshl_b32 {sr(sCc)}, {sr(sA)}, 11
    s_add_u32 {sr(nOb)}, {sr(nOb)}, {sr(sCc)}
    s_branch {le}
    {lc}:
    s_mov_b32 {sr(nSM)}, 1024
    s_mov_b32 {sr(nSU)}, 65536
    s_lshl_b32 {sr(sCc)}, {sr(sA)}, 10
    s_add_u32 {sr(nOb)}, {sr(nOb)}, {sr(sCc)}
    s_cmp_lt_u32 {sr(sB)}, 2
    s_cselect_b32 {sr(nSc)}, {hex(f32bits(cb))}, 1.0
    {le}:
    s_lshl_b32 {sr(sRS64)}, {sr(sRS2)}, 5
    s_lshl_b32 {sr(sWo)}, {sr(sB)}, 9
    s_lshl_b32 {sr(sCc)}, {sr(sRS2)}, 2
    s_mul_i32 {sr(sCc)}, {sr(sCc)}, {sr(sWv)}
    s_add_u32 {sr(sWo)}, {sr(sWo)}, {sr(sCc)}
    s_lshr_b32 {sr(sCc)}, {sr(sRS2)}, 1
    v_mad_u32_u24 {vr(vWs[0])}, {vr(vPc[1])}, {sr(sCc)}, {vr(vPc[0])}
    v_xor_b32 {vr(vWs[1])}, 128, {vr(vWs[0])}
    """)
    assert KB_OFF == QB_OFF + 2 * MB and VB_OFF == QB_OFF + 4 * MB and VT_OFF == 16 * MB and QX_OFF == 32 * MB

def dma_ops(a):
    ops = []
    for i in range(4):
        ops.append(lambda i=i: a(f"s_add_u32 m0, {sr(sLd)}, {i*1024}\ns_add_u32 {sr(sA)}, {sr(sXo)}, {i*8192}\n"
                                 f"buffer_load_dwordx4 {vr(vXs[i&1])}, {sr(sXS,4)}, {sr(sA)} offen lds"))
    for i in range(4):
        pre = f"s_mov_b32 {sr(sB)}, {sr(sWo)}" if i == 0 else f"s_add_u32 {sr(sB)}, {sr(sB)}, {sr(sRS2)}"
        post = f"\ns_add_u32 {sr(sXo)}, {sr(sXo)}, 128\ns_add_u32 {sr(sWo)}, {sr(sWo)}, {sr(sRS64)}\ns_xor_b32 {sr(sLd)}, {sr(sLd)}, 65536" if i == 3 else ""
        ops.append(lambda i=i, pre=pre, post=post: a(f"s_add_u32 m0, {sr(sLd)}, {32768 + i*1024}\n{pre}\n"
                                 f"buffer_load_dwordx4 {vr(vWs[i&1])}, {sr(sWD,4)}, {sr(sB)} offen lds" + post))
    return ops

def frag_reads(a, ks, b):
    ops = []
    for ni in range(2):
        for q in range(2):
            ops.append(lambda ni=ni, q=q: a(f"ds_read_b64_tr_b16 {vr(FW[b]+4*ni+2*q,2)}, {vr(vWr_[ni])} offset:{(16*ks+4*q)*512}"))
    for mi in range(4):
        ops.append(lambda mi=mi: a(f"ds_read_b128 {vr(FX[b]+4*mi,4)}, {vr(vXr[ks])} offset:{mi*4096}"))
    return ops

def take_params(a):
    a(f"""
    s_mov_b32 {sr(sOb)}, {sr(nOb)}
    s_mov_b32 {sr(sSM)}, {sr(nSM)}
    s_mov_b32 {sr(sSN)}, {sr(nSN)}
    s_mov_b32 {sr(sSU)}, {sr(nSU)}
    s_mov_b32 {sr(sTyp)}, {sr(nTyp)}
    s_mov_b32 {sr(sSc)}, {sr(nSc)}
    s_mov_b32 {sr(sSc+1)}, {sr(nSc)}
    s_mov_b32 {sr(sSig)}, {sr(nSig)}
    s_mov_b32 {sr(sInc)}, {sr(nInc)}
    """)

def signal(a, sig, inc, wv, vt=51):
    l = a.newlabel("Lsg")
    a(f"""
    s_cmp_eq_u32 {sr(wv)}, 0
    s_cbranch_scc0 {l}
    s_mov_b64 exec, 1
    v_mov_b32 {vr(vt)}, {inc}
    buffer_atomic_add {vr(vt)}, off, {sr(sWS,4)}, {sig}
    s_mov_b64 exec, -1
    {l}:
    """)

def proj_body(a, next_tile, ntiles, stflags="", after_tile=None, sig=False, mid=None, hook=None, presig=None, chk=None):
    tile_params(a, sTile)
    a(f"s_lshl_b32 {sr(sLd)}, {sr(sWv)}, 12")
    for _ in range(2):
        for g in dma_ops(a): g()
    for r in range(ACC, ACC + 128, 2): a(f"v_mov_b64 {vr(r,2)}, 0")
    a(f"s_mov_b32 {sr(sPInc)}, 0")
    if mid: mid(a)
    a("s_waitcnt vmcnt(8)\ns_barrier")
    if hook: hook(0)
    for g in frag_reads(a, 0, 0): g()
    ttop = a.newlabel("Ltile"); lN = a.newlabel("LtypN"); lep = a.newlabel("Lepi")
    a.label(ttop)
    take_params(a)
    next_tile(a)
    a(f"s_mov_b32 {sr(sIt)}, 0\ns_cmp_eq_u32 {sr(sTyp)}, 0\ns_cbranch_scc0 {lN}")
    for typ in range(2):
        if typ == 1: a.label(lN)
        top = a.newlabel("Lst"); nos = a.newlabel("Lnos")
        a.label(top)
        for ks in range(4):
            b = ks & 1
            side = []
            if ks < 3:
                a("s_waitcnt lgkmcnt(0)")
                side = frag_reads(a, ks + 1, b ^ 1)
            else:
                a(f"s_cmp_eq_u32 {sr(sIt)}, 6\ns_cbranch_scc0 {nos}")
                a(f"s_cmp_lt_u32 {sr(sNext)}, {ntiles}\ns_cselect_b32 {sr(sTile)}, {sr(sNext)}, {sr(sTile)}")
                tile_params(a, sTile)
                a.label(nos)
                for r in vXr + vWr_: a(f"v_xor_b32 {vr(r)}, 65536, {vr(r)}")
                a("s_waitcnt vmcnt(0) lgkmcnt(0)\ns_barrier")
                if sig:
                    ns_ = a.newlabel("Lnsg")
                    a(f"s_cmp_eq_u32 {sr(sPInc)}, 0\ns_cbranch_scc1 {ns_}")
                    if chk: chk(a)
                    signal(a, sr(sPSig), sr(sPInc), sWv)
                    a(f"s_mov_b32 {sr(sPInc)}, 0")
                    a.label(ns_)
                fr = frag_reads(a, 0, b ^ 1); dm = dma_ops(a)
                side = [lambda f=f, d=d: (f(), d()) for f, d in zip(fr, dm)]
            for mi in range(4):
                for ni in range(2):
                    d = ACC + 32 * mi + 16 * ni
                    x, w = vr(FX[b] + 4 * mi, 4), vr(FW[b] + 4 * ni, 4)
                    A, B = (w, x) if typ == 0 else (x, w)
                    a(f"v_mfma_f32_32x32x16_bf16 {vr(d,16)}, {A}, {B}, {vr(d,16)}")
                    side.pop(0)()
        a(f"s_add_u32 {sr(sIt)}, {sr(sIt)}, 1\ns_cmp_lt_u32 {sr(sIt)}, 8\ns_cbranch_scc1 {top}")
        if typ == 0: a(f"s_branch {lep}")
    a.label(lep)
    if presig: presig(a)
    if hook: hook(1)
    for mi in range(4):
        for ni in range(2):
            d = ACC + 32 * mi + 16 * ni
            e = EP + 8 * ((mi * 2 + ni) & 1)
            for j in range(8):
                a(f"v_pk_mul_f32 {vr(d+2*j,2)}, {vr(d+2*j,2)}, {sr(sSc,2)}")
            for j in range(8):
                a(f"v_cvt_pk_bf16_f32 {vr(e+j)}, {vr(d+2*j)}, {vr(d+2*j+1)}")
            if ni == 0: a(f"s_mov_b32 {sr(sA)}, {sr(sOb)}")
            else: a(f"s_add_u32 {sr(sA)}, {sr(sOb)}, {sr(sSN)}\ns_add_u32 {sr(sOb)}, {sr(sOb)}, {sr(sSM)}")
            a(f"s_add_u32 {sr(sB)}, {sr(sA)}, {sr(sSU)}")
            a(f"buffer_store_dwordx4 {vr(e,4)}, {vr(vLn16)}, {sr(sWS,4)}, {sr(sA)} offen {stflags}")
            a(f"buffer_store_dwordx4 {vr(e+4,4)}, {vr(vLn16)}, {sr(sWS,4)}, {sr(sB)} offen {stflags}")
            for j in range(8): a(f"v_mov_b64 {vr(d+2*j,2)}, 0")
    if after_tile: after_tile(a)
    if hook: hook(1)
    a(f"s_mov_b32 {sr(sPSig)}, {sr(sSig)}\ns_mov_b32 {sr(sPInc)}, {sr(sInc)}")
    a.drain()
    a(f"s_cmp_lt_u32 {sr(sNext)}, {ntiles}\ns_cbranch_scc1 {ttop}")
    a("s_waitcnt vmcnt(0) lgkmcnt(0)\ns_barrier")
    if sig:
        if chk: chk(a)
        signal(a, sr(sPSig), sr(sPInc), sWv)

def gate_rows(a, first, stride):
    top = a.newlabel("Lg"); end = a.newlabel("Lge")
    a(f"""
    s_load_dwordx2 s[84:85], s[0:1], {GATE_W}
    s_waitcnt lgkmcnt(0)
    global_load_dwordx4 v[8:11], {vr(vLn16)}, s[84:85]
    {top}:
    s_cmp_lt_u32 {sr(first)}, 2048
    s_cbranch_scc0 {end}
    s_lshl_b32 {sr(sA)}, {sr(first)}, 10
    buffer_load_dwordx4 v[12:15], {vr(vLn16)}, {sr(sXS,4)}, {sr(sA)} offen
    s_waitcnt vmcnt(0)
    v_mov_b32 v16, 0
    v_dot2c_f32_bf16 v16, v8, v12
    v_dot2c_f32_bf16 v16, v9, v13
    v_dot2c_f32_bf16 v16, v10, v14
    v_dot2c_f32_bf16 v16, v11, v15
    s_nop 3
    v_add_f32_dpp v16, v16, v16 quad_perm:[1,0,3,2] row_mask:0xf bank_mask:0xf
    v_add_f32_dpp v16, v16, v16 quad_perm:[2,3,0,1] row_mask:0xf bank_mask:0xf
    v_add_f32_dpp v16, v16, v16 row_ror:4 row_mask:0xf bank_mask:0xf
    v_add_f32_dpp v16, v16, v16 row_ror:8 row_mask:0xf bank_mask:0xf
    v_mov_b32 v17, v16
    v_permlane16_swap_b32 v16, v17
    v_add_f32 v16, v16, v17
    v_mov_b32 v17, v16
    v_permlane32_swap_b32 v16, v17
    v_add_f32 v16, v16, v17
    v_mul_f32 v16, {hex(f32bits(-math.log2(math.e)))}, v16
    v_exp_f32 v16, v16
    v_add_f32 v16, 1.0, v16
    v_rcp_f32 v16, v16
    s_lshl_b32 {sr(sA)}, {sr(first)}, 2
    s_add_u32 {sr(sA)}, {sr(sA)}, {G_OFF}
    s_mov_b64 exec, 1
    buffer_store_dword v16, {vr(vLn16)}, {sr(sWS,4)}, {sr(sA)} offen sc1
    s_mov_b64 exec, -1
    s_add_u32 {sr(first)}, {sr(first)}, {stride}
    s_branch {top}
    {end}:
    """)
```

```python
import sys
from asmlib import *
from layout import *
import chain8 as C
import proj as P
import battn as BA
import aattn as AA
import final as F
from build_v1 import KD
NAME = "gated_mix__memory_aug_recurrent_mem_tr__softmax_full_mha__prompt_kernel"
NW = 224
sRank, sDBGp, sSp, sWv = 100, 98, 33, 36
SPINMAX = 1 << 22

def gen(opt=None):
    opt = dict(opt or {})
    opt["fused"] = True
    C.DBG.clear(); C.DBG.update(opt); C.DBG["kvflags"] = "sc1"
    a = Asm()
    ref = open("gated_mix__memory_aug_recurrent_mem_tr__softmax_full_mha__prompt.s.ref").read().split("\n") if opt.get("header", True) else []
    for l in ref:
        if l.startswith(";") and "@launch" not in l: a.raw(l)
        elif not l.startswith(";"): break
    if opt.get("aslist"): a.raw(f"; @launch kernel={NAME} grid=(256,1,1) block=(512,1,1) lds=163840")
    else: a.raw("; @launch grid=(256,1,1) block=(512,1,1) lds=163840")
    a.raw(f'.amdgcn_target "amdgcn-amd-amdhsa--gfx950"\n.text\n.globl {NAME}\n.p2align 8\n.type {NAME},@function')
    a.label(NAME)
    def stamp(slot, vt=1):
        if not opt.get("ts"): return
        a(f"""
        s_memrealtime s[96:97]
        s_waitcnt lgkmcnt(0)
        v_mov_b32 v{vt}, s96
        s_lshl_b32 s97, s2, 7
        s_add_u32 s97, s97, {100*MB}
        s_add_u32 s97, s97, {slot}
        buffer_store_dword v{vt}, off, s[4:7], s97
        """)
    def ticket(off, dst, inc=1):
        l = a.newlabel("Ltk")
        a(f"""
        v_mov_b32 v2, {off}
        v_mov_b32 v3, {inc}
        v_mov_b32 v5, {160*1024 - 16}
        v_cmp_eq_u32 vcc, 0, v0
        s_and_saveexec_b64 s[68:69], vcc
        s_cbranch_execz {l}
        global_atomic_add v4, v2, v3, {sr(sDBGp,2)} sc0
        s_waitcnt vmcnt(0)
        ds_write_b32 v5, v4
        s_waitcnt lgkmcnt(0)
        {l}:
        s_mov_b64 exec, s[68:69]
        s_barrier
        ds_read_b32 v4, v5
        s_waitcnt lgkmcnt(0)
        v_readfirstlane_b32 {sr(dst)}, v4
        s_barrier
        """)
    def poll(load, cond, vt=1, sleep=8, barrier=True, allwaves=False, width=1):
        l = a.newlabel("Lpl"); e = a.newlabel("Lpe")
        if not allwaves: a(f"s_cmp_eq_u32 {sr(sWv)}, 0\ns_cbranch_scc0 {e}")
        a.label(l)
        a(f"""
        {load}
        s_add_u32 {sr(sSp)}, {sr(sSp)}, 1
        s_cmp_gt_u32 {sr(sSp)}, {SPINMAX}
        s_cbranch_scc1 Lexit
        s_waitcnt vmcnt(0)
        {cond}
        s_cbranch_vccz {e}
        s_sleep {sleep}
        s_branch {l}
        """)
        a.label(e)
        if barrier: a("s_barrier")
    def poll_ge(soff, val, **kw):
        poll(f"buffer_load_dword v1, off, s[4:7], {soff} sc1", f"v_cmp_gt_u32 vcc, {val}, v1", **kw)
    def wait_init(**kw):
        poll(f"v_mov_b32 v1, {DBG_INIT}\nglobal_load_dword v1, v1, {sr(sDBGp,2)} sc1", "v_cmp_eq_u32 vcc, 0, v1", **kw)

    a(f"""
    s_cmp_lt_u32 s2, 256
    s_cbranch_scc0 Lexit
    s_load_dwordx4 s[64:67], s[0:1], {D_DBG}
    s_getreg_b32 s3, hwreg(HW_REG_XCC_ID)
    s_and_b32 s3, s3, 15
    v_lshrrev_b32 v1, 6, v0
    v_readfirstlane_b32 {sr(sWv)}, v1
    s_mov_b32 s6, {WS_SIZE}
    s_mov_b32 s7, 0x20000
    s_mov_b32 {sr(sSp)}, 0
    s_waitcnt lgkmcnt(0)
    s_mov_b32 {sr(sDBGp)}, s64
    s_mov_b32 {sr(sDBGp+1)}, s65
    s_mov_b32 s4, s66
    s_mov_b32 s5, s67
    """)
    stamp(0)
    a(f"""
    s_add_u32 s3, s3, {opt.get('xshift', 0)}
    s_and_b32 s94, s3, {opt.get('xmask', 7)}
    s_lshr_b32 s95, s2, 3
    v_mov_b32 v63, v0
    Lclaim:
    s_lshl_b32 s70, s94, 2
    s_add_u32 s70, s70, {DBG_SLOT}
    s_lshl_b32 s71, 1, s95
    v_mov_b32 v2, s70
    v_mov_b32 v3, s71
    s_cmp_eq_u32 {sr(sWv)}, 0
    s_cbranch_scc0 Lnoat
    s_mov_b64 exec, 1
    global_atomic_or v62, v2, v3, {sr(sDBGp,2)} sc0
    s_mov_b64 exec, -1
    Lnoat:
    s_sub_u32 {sr(sRank)}, s94, 1
    s_lshl_b32 {sr(sRank)}, {sr(sRank)}, 5
    s_add_u32 {sr(sRank)}, {sr(sRank)}, s95
    s_cmp_eq_u32 s94, 0
    s_cbranch_scc0 Lworker
    s_mov_b32 {sr(C.sH)}, s95
    s_cmp_eq_u32 s3, 0
    s_cselect_b32 s101, 1, 0x10001
    """)
    def confirm(nyoung, wv):
        l = a.newlabel("Lcf")
        a(f"""
        v_mov_b32 v61, {160*1024 - 16}
        s_cmp_eq_u32 {wv}, 0
        s_cbranch_scc0 {l}
        s_waitcnt vmcnt({nyoung})
        s_mov_b64 exec, 1
        ds_write_b32 v61, v62
        s_mov_b64 exec, -1
        s_waitcnt lgkmcnt(0)
        {l}:
        s_barrier
        ds_read_b32 v61, v61
        s_waitcnt lgkmcnt(0)
        v_readfirstlane_b32 s70, v61
        s_bitcmp1_b32 s70, s95
        s_cbranch_scc1 Lreclaim
        """)
        zero_flags(wv)
    def zero_flags(wv):
        l = a.newlabel("Lnz")
        a(f"""
        s_cmp_eq_u32 s2, 0
        s_cbranch_scc0 {l}
        s_mul_i32 s70, {wv}, 5120
        s_add_u32 s70, s70, {FL_OFF}
        v_and_b32 v61, 63, v63
        v_lshlrev_b32 v61, 4, v61
        v_mov_b64 v[12:13], 0
        v_mov_b64 v[14:15], 0
        """)
        for j in range(5):
            a(f"buffer_store_dwordx4 v[12:15], v61, s[4:7], s70 offen sc1")
            if j < 4: a("s_add_u32 s70, s70, 1024")
        a(f"""
        s_waitcnt vmcnt(0)
        s_barrier
        s_cmp_eq_u32 {wv}, 0
        s_cbranch_scc0 {l}
        s_mov_b64 exec, 1
        v_mov_b32 v12, {DBG_INIT}
        v_mov_b32 v13, 1
        global_store_dword v12, v13, {sr(sDBGp,2)} sc1
        s_mov_b64 exec, -1
        s_waitcnt vmcnt(0)
        """)
        a.label(l)
    a.label("Lchain")
    from chain8 import sW, sRole, sH, sS, sEnd, sSpin, sTmp, vW16, sCp, sFl, sF, T0
    assert sSpin == sSp
    a(f"""
    s_mov_b32 s93, {sr(sWv)}
    s_lshr_b32 {sr(sRole)}, {sr(sWv)}, 2
    s_and_b32 {sr(sW)}, {sr(sWv)}, 3
    s_mov_b32 {sr(sS)}, 0
    s_mov_b32 {sr(sEnd)}, 63
    s_lshl_b32 {sr(sCp)}, {sr(sH)}, 7
    s_lshl_b32 {sr(sTmp)}, {sr(sW)}, 2
    s_add_u32 {sr(sCp)}, {sr(sCp)}, {sr(sTmp)}
    s_add_u32 {sr(sCp)}, {sr(sCp)}, {FL_CP}
    s_lshr_b32 {sr(sFl)}, {sr(sH)}, 1
    s_lshl_b32 {sr(sFl)}, {sr(sFl)}, 7
    s_add_u32 {sr(sFl)}, {sr(sFl)}, {FL_KVQ}
    s_mov_b32 {sr(sF)}, {sr(sFl)}
    """)
    C.setup_common(a); C.init_scalars(a)
    a(f"s_cmp_eq_u32 {sr(sRole)}, 0\ns_cbranch_scc0 LroleB")
    for role in "AB":
        if role == "B": a.label("LroleB")
        g = C.load_weights(a, role); next(g)
        confirm(12, "s93")
        C.init_rings(a, "sc1", 0)
        a("s_waitcnt vmcnt(0)\ns_barrier")
        if role == "A":
            a(f"""
            v_mov_b32 v2, {DBG_READY}
            v_mov_b32 v3, s101
            v_cmp_eq_u32 vcc, 0, {vr(vW16)}
            s_and_saveexec_b64 s[68:69], vcc
            s_cbranch_execz Lnoarr
            global_atomic_add v2, v3, {sr(sDBGp,2)}
            s_waitcnt vmcnt(0)
            Lnoarr:
            s_mov_b64 exec, s[68:69]
            """)
        next(g)
        if role == "B": stamp(4)
        poll(f"v_mov_b32 v1, {DBG_READY}\nglobal_load_dword v1, v1, {sr(sDBGp,2)} sc1",
             "v_and_b32 v2, 0xffff, v1\nv_cmp_gt_u32 vcc, 32, v2", barrier=False, allwaves=True, sleep=2)
        a("v_readfirstlane_b32 s101, v1")
        if role == "A":
            C.setup_A(a); C.prep_A(a)
        else:
            C.setup_B(a)
            wait_init(barrier=False, allwaves=True)
            C.kv_wait(a, "Lexit", SPINMAX)
            C.kv_load(a)
            a("s_waitcnt vmcnt(0)")
            C.kv_write(a); C.prep_B(a)
            stamp(8)
        fn = C.loop_A if role == "A" else C.loop_B
        if opt.get("ts") and role == "B":
            def dump(a):
                a(f"""
                s_memrealtime s[96:97]
                s_memtime s[94:95]
                s_waitcnt lgkmcnt(0)
                v_mov_b32 v0, s96
                v_mov_b32 v1, s94
                s_lshl_b32 s97, {sr(sH)}, 10
                s_lshl_b32 s95, {sr(sS)}, 3
                s_add_u32 s97, s97, s95
                s_add_u32 s97, s97, {101*MB}
                s_mov_b64 exec, 1
                buffer_store_dwordx2 v[0:1], off, s[4:7], s97
                s_mov_b64 exec, -1
                """)
            opt["dumpB"] = dump
        a(f"s_cmp_gt_u32 s101, 0xffff\ns_cbranch_scc1 Lsafe{role}")
        fn(a, "", "sc1", "Lexit", f"Ldf{role}", opt)
        a.label(f"Lsafe{role}")
        fn(a, "sc1", "sc1", "Lexit", f"Lds{role}", opt)
        a.label(f"Ldf{role}"); a.label(f"Lds{role}")
        a("s_waitcnt vmcnt(0)\ns_barrier")
        if role == "B":
            a(f"""
            s_mov_b64 exec, 1
            v_mov_b32 v1, 64
            buffer_store_dword v1, off, s[4:7], {sr(sCp)} sc1
            """)
            stamp(12)
        a("s_endpgm")
    a.label("Lreclaim")
    a(f"""
    s_waitcnt vmcnt(0)
    s_barrier
    v_mov_b32 v0, v63
    v_lshrrev_b32 v1, 6, v0
    v_readfirstlane_b32 {sr(sWv)}, v1
    s_add_u32 {sr(sSp)}, {sr(sSp)}, 1
    s_cmp_gt_u32 {sr(sSp)}, 4096
    s_cbranch_scc1 Lexit
    s_ff0_i32_b32 s95, s70
    s_cmp_lt_i32 s95, 0
    s_cbranch_scc0 Lclaim
    s_add_u32 s94, s94, 1
    s_and_b32 s94, s94, 7
    s_mov_b32 s95, 0
    s_branch Lclaim
    """)
    a.label("Lworker")
    P.proj_setup(a)
    after_tile = None
    def presig(a):
        a(f"v_mov_b32 v55, {DBG_INIT}\nglobal_load_dword v55, v55, {sr(sDBGp,2)} sc1")
    def chk(a):
        l = a.newlabel("Lck")
        a(f"v_cmp_eq_u32 vcc, 0, v55\ns_cbranch_vccz {l}")
        poll(f"v_mov_b32 v55, {DBG_INIT}\nglobal_load_dword v55, v55, {sr(sDBGp,2)} sc1", "v_cmp_eq_u32 vcc, 0, v55", barrier=False, allwaves=True)
        a.label(l)
    def hook(k):
        if not opt.get("ts"): return
        if k == 0: a("s_mov_b32 s92, 32")
        stamp("s92", vt=54); a("s_add_u32 s92, s92, 4")
    a(f"s_mov_b32 {sr(P.sTile)}, {sr(sRank)}")
    P.proj_body(a, lambda a: a(f"s_add_u32 {sr(P.sNext)}, {sr(P.sTile)}, {NW}"), 432, stflags=opt.get("projst", "sc1"), after_tile=after_tile, sig=True, mid=lambda a: confirm(16, sr(sWv)), hook=hook, presig=presig, chk=chk)
    stamp(4)
    a(f"""
    s_cmp_lt_u32 {sr(sRank)}, {432-NW}
    s_cbranch_scc1 Lnogate
    s_sub_u32 s82, {sr(sRank)}, {432-NW}
    s_lshl_b32 s82, s82, 3
    s_add_u32 s82, s82, {sr(sWv)}
    """)
    P.gate_rows(a, 82, 128)
    a(f"s_waitcnt vmcnt(0)\ns_barrier\ns_mov_b32 s40, {FL_BQ}")
    P.signal(a, "s40", 1, sWv)
    a.label("Lnogate")
    a("v_mov_b32 v0, v63")
    BA.battn_setup(a)
    a(f"s_mov_b32 s40, {FL_BQ}")
    poll_ge("s40", 64, barrier=False)
    a("buffer_inv sc1\ns_waitcnt vmcnt(0)\ns_barrier")
    stamp(8)
    a(f"""
    s_and_b32 s30, {sr(sRank)}, 31
    s_lshl_b32 s30, s30, 3
    s_lshr_b32 s31, {sr(sRank)}, 5
    s_add_u32 s30, s30, s31
    Lbloop:
    """)
    BA.battn_task(a, 30, ldflags="sc1", stflags="sc1", drain=True)
    a(f"""
    s_and_b32 s40, s30, 7
    s_lshl_b32 s40, s40, 7
    s_add_u32 s40, s40, {FL_BD}
    """)
    P.signal(a, "s40", 1, sWv, vt=1)
    a(f"""
    s_and_b32 s31, s30, 7
    s_add_u32 s30, s30, 1
    s_cmp_eq_u32 s31, 6
    s_cbranch_scc1 Lbloop
    """)
    stamp(12)
    NFIN = 128
    a(f"""
    s_cmp_lt_u32 {sr(sRank)}, {NFIN}
    s_cbranch_scc1 Lfinal
    s_cmp_lt_u32 {sr(sRank)}, 192
    s_cbranch_scc0 Lexit
    """)
    AA.aattn_setup(a)
    a(f"""
    s_sub_u32 s20, {sr(sRank)}, {NFIN}
    s_lshl_b32 s20, s20, 3
    s_add_u32 s20, s20, {sr(sWv)}
    s_and_b32 s21, s20, 31
    s_lshl_b32 s22, s21, 7
    s_add_u32 s22, s22, {FL_CP}
    s_lshr_b32 s21, s21, 1
    s_lshl_b32 s21, s21, 7
    s_add_u32 s21, s21, {FL_KVQ}
    Laloop:
    s_lshr_b32 s23, s20, 8
    s_lshl_b32 s23, s23, 11
    s_add_u32 s23, s23, s21
    """)
    poll_ge("s23", 18, barrier=False, allwaves=True)
    AA.aattn_loads_x(a, 20, "sc1")
    a("s_lshr_b32 s24, s20, 5")
    a("s_sub_u32 s25, s24, 3\ns_max_i32 s25, s25, 0")
    ldcp = "buffer_load_dwordx4 v[4:7], off, s[4:7], s22 sc1"
    mn = "v_min3_u32 v4, v4, v5, v6\nv_min_u32 v4, v4, v7\n"
    poll(ldcp, mn + "v_cmp_gt_u32 vcc, s25, v4", sleep=64)
    poll(ldcp, mn + "v_cmp_ge_u32 vcc, s24, v4", barrier=False, allwaves=True, sleep=opt.get("asleep", 6))
    AA.aattn_loads_m(a, 20, "sc1")
    AA.aattn_compute(a, 20, "sc1")
    a(f"""
    s_waitcnt vmcnt(0)
    s_barrier
    s_lshl_b32 s40, s24, 7
    s_add_u32 s40, s40, {FL_OC}
    """)
    P.signal(a, "s40", 1, sWv, vt=1)
    a("s_add_u32 s20, s20, 512\ns_cmp_lt_u32 s20, 2048\ns_cbranch_scc1 Laloop")
    stamp(16)
    a("s_endpgm")
    a.label("Lfinal")
    a(f"s_and_b32 s30, {sr(sRank)}, 15\ns_lshr_b32 s31, {sr(sRank)}, 4")
    F.final_setup(a, 30)
    stamp(16)
    a.label("Lfloop")
    a(f"s_lshr_b32 s40, s31, 3\ns_lshl_b32 s40, s40, 7\ns_add_u32 s40, s40, {FL_BD}")
    poll_ge("s40", 32, barrier=False)
    a(f"s_sub_u32 s41, s31, 2\ns_max_i32 s41, s41, 0\ns_mov_b32 s40, {FL_CP}")
    poll_ge("s40", "s41", barrier=False, sleep=64)
    a(f"s_lshl_b32 s40, s31, 7\ns_add_u32 s40, s40, {FL_OC}")
    poll_ge("s40", 4, sleep=opt.get("fsleep", 6))
    F.final_segment(a, 31, "sc1")
    a(f"s_add_u32 s31, s31, {NFIN//16}\ns_cmp_lt_u32 s31, 64\ns_cbranch_scc1 Lfloop")
    stamp(20)
    a.label("Lexit")
    a("s_endpgm")
    a.raw(KD.format(name=NAME, vgpr=256, acc=256))
    return a.text()
if __name__ == "__main__":
    open("fused.s", "w").write(gen())
```
